```python
import torch

def _softmax(x, axis=-1):
    return torch.softmax(x, dim=axis)
def _gelu(x):
    return torch.nn.functional.gelu(x, approximate="tanh")
def _silu(x):
    return torch.nn.functional.silu(x)
def _sigmoid(x):
    return torch.sigmoid(x)
def _layernorm(x, axis=-1, eps=1e-5):
    m = x.mean(dim=axis, keepdim=True)
    v = x.var(dim=axis, keepdim=True, unbiased=False)
    return (x - m) / torch.sqrt(v + eps)
def _scatter_add(tgt, idx, src, axis=0):
    return tgt.clone().index_add_(axis, idx, src)
def _segment_sum(src, seg, n):
    out = torch.zeros((n,) + src.shape[1:], dtype=src.dtype)
    return out.index_add_(0, seg, src)
def _pad(x, pw):
    flat = tuple(v for pair in reversed(pw) for v in pair)
    return torch.nn.functional.pad(x, flat)

kernel_name = 'gated_mix__sliding_block__glu_gated_glu__prompt'

def setup_inputs():

    _w = (lambda a: (lambda t: t.to(torch.bfloat16) if t.is_floating_point() else t)(torch.as_tensor(a)))
    def _A_setup():
        B, S, D = 1, 2048, 512
        return {
            "x": _w((lambda *s: torch.randn(*s, dtype=torch.bfloat16) * 0.05)(B, S, D)),
            "wqkv": _w((lambda *s: torch.randn(*s, dtype=torch.bfloat16) * 0.8)(D, 3 * D)),
            "wo": _w((lambda *s: torch.randn(*s, dtype=torch.bfloat16) * 0.05)(D, D)),
        }
    _A_in = _A_setup()

    def _B_setup():
        B, S, D, F = 1, 2048, 512, 1376
        return {
            "x": _w((lambda *s: torch.randn(*s, dtype=torch.bfloat16) * 0.05)(B, S, D)),
            "w_gate": _w((lambda *s: torch.randn(*s, dtype=torch.bfloat16) * 1.6)(D, F)),
            "w_up": _w((lambda *s: torch.randn(*s, dtype=torch.bfloat16) * 0.1)(D, F)),
            "w_down": _w((lambda *s: torch.randn(*s, dtype=torch.bfloat16) * 0.1)(F, D)),
        }
    _B_in = _B_setup()

    return {
        "A_x": _A_in["x"],
        "A_wqkv": _A_in["wqkv"],
        "A_wo": _A_in["wo"],
        "B_x": _B_in["x"],
        "B_w_gate": _B_in["w_gate"],
        "B_w_up": _B_in["w_up"],
        "B_w_down": _B_in["w_down"],
        "gate_w": _w((lambda *s: torch.randn(*s, dtype=torch.bfloat16) * 0.05)(512) * 16.0),
    }

def reference(A_x, A_wqkv, A_wo, B_x, B_w_gate, B_w_up, B_w_down, gate_w):
    def _A_ref(x, wqkv, wo):
        B, S, D = x.shape
        H = 32; Dh = D // H; W = 256
        qkv = (lambda x, *d: x.permute(*d))((x @ wqkv).reshape(B, S, 3, H, Dh), 2, 0, 3, 1, 4)
        q, k, v = qkv[0], qkv[1], qkv[2]
        scores = torch.einsum("bhqd,bhkd->bhqk", q, k) * (Dh ** -0.5)
        idx = torch.arange(S)
        mask = (idx[:, None] - idx[None, :] >= 0) & (idx[:, None] - idx[None, :] < W)
        scores = torch.where(mask[None, None], scores, -1e9)
        p = _softmax(scores, axis=-1)
        o = torch.einsum("bhqk,bhkd->bhqd", p, v)
        return (lambda x, *d: x.permute(*d))(o, 0, 2, 1, 3).reshape(B, S, D) @ wo

    def _B_ref(x, w_gate, w_up, w_down):
        g = torch.einsum("bsd,df->bsf", x, w_gate)
        u = torch.einsum("bsd,df->bsf", x, w_up)
        h = _sigmoid(g) * u
        return torch.einsum("bsf,fd->bsd", h, w_down)

    x = A_x
    g = _sigmoid((x * gate_w).sum(-1, keepdims=True))
    a = _A_ref(x, A_wqkv, A_wo)
    b = _B_ref(x, B_w_gate, B_w_up, B_w_down)
    return g * a + (1 - g) * b
```

```python
import re

_REG = re.compile(r"^-?\|?(?:abs\()?([vas])(?:(\d+)|\[(\d+):(\d+)\])\)?\|?$")
TRANS = ("v_exp_f32", "v_log_f32", "v_rcp_f32", "v_rsq_f32", "v_sqrt_f32", "v_sin_f32", "v_cos_f32")

def regs_of(op):
    op = op.strip()
    if op in ("vcc", "vcc_lo", "vcc_hi"): return {"vcc"}
    if op in ("exec", "exec_lo", "exec_hi"): return {"exec"}
    if op == "m0": return {"m0"}
    m = _REG.match(op)
    if not m: return set()
    k = m.group(1)
    if m.group(2) is not None: return {f"{k}{int(m.group(2))}"}
    return {f"{k}{i}" for i in range(int(m.group(3)), int(m.group(4)) + 1)}

def split_ops(s):
    out, cur, depth = [], "", 0
    for ch in s:
        if ch in "[(": depth += 1
        if ch in "])": depth -= 1
        if ch == "," and depth == 0:
            out.append(cur.strip()); cur = ""
        else: cur += ch
    if cur.strip(): out.append(cur.strip())
    return out

class I:
    __slots__ = ("text","mn","cls","rd","wr","srcc","ab","passes","states","wide","lds","data")
    def __init__(self, text):
        self.text = text
        t = text.split(";")[0].strip()
        parts = t.split(None, 1)
        mn = parts[0]; self.mn = mn
        rest = parts[1] if len(parts) > 1 else ""
        ops = split_ops(rest)
        mods = ""
        if ops:
            last = ops[-1].split()
            ops[-1] = last[0]; mods = " ".join(last[1:])
        R = [regs_of(o) for o in ops]
        U = lambda l: set().union(*l) if l else set()
        self.rd, self.wr, self.srcc, self.ab = set(), set(), set(), set()
        self.passes = 0; self.states = 1; self.wide = False; self.lds = False; self.data = set()
        if mn.startswith("v_mfma"):
            self.cls = "mfma"; self.wr = R[0]; self.ab = R[1] | R[2]; self.srcc = R[3]; self.rd = self.ab | self.srcc
            self.passes = 8 if "32x32" in mn else 4
        elif mn.startswith("v_"):
            self.cls = "trans" if mn.replace("_e32","").replace("_e64","") in TRANS else "valu"
            if mn.startswith("v_permlane"):
                self.rd = U(R); self.wr = U(R)
            elif mn.startswith("v_cmp"):
                self.wr = R[0]; self.rd = U(R[1:])
            elif mn.startswith("v_add_co") or mn.startswith("v_addc_co"):
                self.wr = R[0] | R[1]; self.rd = U(R[2:])
            else:
                self.wr = R[0]; self.rd = U(R[1:])
                if mn.startswith(("v_fmac", "v_dot2c")): self.rd |= R[0]
        elif mn.startswith("ds_read"):
            self.cls = "ds"; self.wr = R[0]; self.rd = U(R[1:])
        elif mn.startswith("ds_"):
            self.cls = "ds"; self.rd = U(R)
        elif mn.startswith(("buffer_load", "global_load")):
            self.cls = "vm"
            if " lds" in " " + mods or mn.startswith("global_load_lds"):
                self.lds = True; self.rd = U(R) | {"m0"}
            else:
                self.wr = R[0]; self.rd = U(R[1:])
        elif mn.startswith(("buffer_store", "buffer_atomic")):
            self.cls = "vm"; self.rd = U(R); self.data = R[0]
            self.wide = "x4" in mn or "x3" in mn
        elif mn.startswith("global_store"):
            self.cls = "vm"; self.rd = U(R); self.data = R[1]; self.wide = "x4" in mn or "x3" in mn
        elif mn == "s_nop":
            self.cls = "nop"; self.states = int(ops[0]) + 1
        elif mn.startswith(("s_load", "s_memtime", "s_memrealtime")):
            self.cls = "smem"; self.wr = R[0]; self.rd = U(R[1:])
        elif mn.startswith(("s_waitcnt", "s_barrier", "s_cbranch", "s_branch", "s_endpgm", "s_sleep", "s_setprio")):
            self.cls = "ctl"
            if "vcc" in mn: self.rd = {"vcc"}
        elif mn.startswith("s_cmp"):
            self.cls = "salu"; self.rd = U(R)
        elif mn.startswith("s_"):
            self.cls = "salu"; self.wr = R[0]; self.rd = U(R[1:])
            if "saveexec" in mn: self.wr |= {"exec"}
        else:
            raise ValueError("unknown instruction: " + text)

def hazard(p, c):
    n = 0
    pv = p.cls in ("valu", "trans")
    cv = c.cls in ("valu", "trans")
    if pv:
        vw = {r for r in p.wr if r[0] in "va" and r != "vcc"}
        sw = p.wr - vw
        if c.cls == "mfma" and vw & c.rd: n = max(n, 2)
        if c.mn.startswith(("v_readfirstlane", "v_readlane")) and vw & c.rd: n = max(n, 1)
        if c.mn.startswith("v_permlane") and vw & c.rd: n = max(n, 2)
        if cv and ("row_" in c.text or "quad_perm" in c.text) and vw & c.rd: n = max(n, 2)
        if p.cls == "trans" and c.cls == "valu" and vw & c.rd: n = max(n, 1)
        if p.cls == "trans" and c.cls in ("mfma",) and vw & c.rd: n = max(n, 2)
        if sw:
            if cv and sw & c.rd: n = max(n, 2)
            if c.cls == "vm" and sw & c.rd: n = max(n, 5)
            if c.cls in ("salu", "ctl", "smem") and sw & c.rd: n = max(n, 1)
    if p.cls == "mfma":
        big = {4: 8, 8: 12}[p.passes]
        if c.cls == "mfma":
            if p.wr & c.ab: n = max(n, big)
            if p.wr & c.srcc and not (p.wr == c.srcc and p.passes == c.passes): n = max(n, big - 2)
            if p.wr & c.wr and not (p.wr == c.srcc and p.passes == c.passes): n = max(n, big - 2)
        elif cv or c.cls in ("ds", "vm"):
            if p.wr & (c.rd | c.wr): n = max(n, big)
        if cv and p.srcc & c.wr: n = max(n, {4: 3, 8: 7}[p.passes])
    if p.cls == "salu" and "m0" in p.wr and c.lds: n = max(n, 1)
    if p.cls == "vm" and p.wide and p.data & c.wr: n = max(n, 2)
    return n

class Emit:
    def __init__(self):
        self.out = []
        self.hist = []
        self.vmq = []
        self.lgq = []
        self.nops = 0
        self.uid = 0
        self.nbytes_hint = 0
        self.log = []
    def raw(self, line):
        self.out.append(line)
    def label(self, name):
        self.out.append(name + ":")
    def newlabel(self, b):
        self.uid += 1
        return f"{b}_{self.uid}"
    def _push(self, ins):
        self.out.append("    " + ins.text)
        self.hist.append(ins)
        if len(self.hist) > 24: self.hist.pop(0)
    def _wait(self, vm=None, lg=None):
        parts = []
        if vm is not None:
            parts.append(f"vmcnt({min(vm,63)})"); del self.vmq[:len(self.vmq) - min(vm,63)]
        if lg is not None:
            parts.append(f"lgkmcnt({min(lg,15)})"); del self.lgq[:len(self.lgq) - min(lg,15)]
        if parts: self._push(I("s_waitcnt " + " ".join(parts)))
    def _need(self, q, pred):
        idx = -1
        for i, ent in enumerate(q):
            if pred(ent): idx = i
        return None if idx < 0 else len(q) - 1 - idx
    def wait_tag(self, tag, lgtag=None):
        vm = self._need(self.vmq, lambda e: e[1] == tag) if tag is not None else None
        lg = self._need(self.lgq, lambda e: e[1] == lgtag) if lgtag is not None else None
        self._wait(vm, lg)
    def wait_all(self, vm=True, lg=True):
        self._wait(0 if vm and self.vmq else None, 0 if lg and self.lgq else None)
    def force_wait(self, text):
        ins = I(text); self._push(ins)
        if "vmcnt(0)" in text: self.vmq = []
        if "lgkmcnt(0)" in text: self.lgq = []
    def __call__(self, text, tag=None):
        for line in text.split("\n"):
            line = line.strip()
            if not line: continue
            if line.endswith(":"): self.label(line[:-1]); continue
            if line.startswith("."): self.raw(line); continue
            if line.startswith(";"): self.raw("    " + line); continue
            self.one(line, tag)
    def one(self, line, tag=None):
        ins = I(line)
        touched = ins.rd | ins.wr
        vm = self._need(self.vmq, lambda e: e[0] & touched)
        lg = self._need(self.lgq, lambda e: e[0] & touched)
        if vm is not None or lg is not None: self._wait(vm, lg)
        need = 0; dist = 0
        for p in reversed(self.hist):
            h = hazard(p, ins)
            if h - dist > need: need = h - dist
            dist += p.states
            if dist >= 20: break
        if need > 0:
            self.nops += need
            self.log.append((len(self.out), need, line))
            self._push(I(f"s_nop {need-1}"))
        self._push(ins)
        if ins.cls == "vm": self.vmq.append((set(ins.wr), tag))
        elif ins.cls == "ds": self.lgq.append((set(ins.wr), tag))
    def fence_hazards(self):
        self._push(I("s_nop 15")); self._push(I("s_nop 3"))
    def text(self):
        return "\n".join(self.out) + "\n"

class Regs:
    def __init__(self, n, start=0):
        self.free = [True]*n
        for i in range(start): self.free[i] = False
        self.hi = start
        self.names = {}
    def alloc(self, n, align=1, name=None):
        if n >= 2 and align == 1: align = 2
        i = 0
        while i + n <= len(self.free):
            if i % align == 0 and all(self.free[i:i+n]):
                for k in range(i, i+n): self.free[k] = False
                self.hi = max(self.hi, i+n)
                return i
            i += 1
        raise RuntimeError(f"out of registers for {name} ({n})")
    def release(self, i, n):
        for k in range(i, i+n):
            assert not self.free[k]
            self.free[k] = True
```

```python
import sys, math, struct
from emit import Emit, Regs

KNAME = "gated_mix__sliding_block__glu_gated_glu__prompt_kernel"

KVOFF = 0
HOFF = 4 << 20
OOFF = 10 << 20
FLAGOFF = 12 << 20
STAMPOFF = 13 << 20
WS_USED = 14 << 20
OOB = 0x80000000

SLOT = 28672
NSLOT = 5
KVB = 110592
GWB = 159744
ZB = GWB + 2048
LDS_BYTES = 163840
WRING = 27648
REDROW = 272
BIAS = 4096

def f2u(x):
    return struct.unpack("<I", struct.pack("<f", x))[0]

def v(i, n=1): return f"v{i}" if n == 1 else f"v[{i}:{i+n-1}]"
def a(i, n=1): return f"a{i}" if n == 1 else f"a[{i}:{i+n-1}]"
def s(i, n=1): return f"s{i}" if n == 1 else f"s[{i}:{i+n-1}]"
def phys(c): return ((c + 2) % NSLOT) * SLOT

MF = "v_mfma_f32_32x32x16_bf16"

SX, SWQ, SWG, SWU, SWD, SWO, SWS, SOUT, SDBG, SGW = 8, 12, 16, 20, 24, 28, 32, 36, 40, 44
SP = 48
S_W, S_R, S_J, S_ROT, S_RB, S_CB = 70, 71, 72, 73, 74, 75
S_T0, S_T1, S_T2, S_T3 = 76, 77, 78, 79
S_XO, S_WO = 80, 81
S_MX, S_MW = 82, 83
S_GB = 84
S_MA, S_MB = 86, 88
S_C0 = 90
S_RING = 92
S_CNT = 93
S_WV = 94
S_ST = 96


class Gen:
    def __init__(self, stamps=False, force_slow=False, look=2, fmap="4x8", rot=True, touch=True, codepf=True):
        self.o = dict(stamps=stamps, force_slow=force_slow, look=look, fmap=fmap, rot=rot, touch=touch, codepf=codepf)
        self.e = Emit()
        self.V = Regs(256, 1)
        self.tail = []
        self.nst = 0

    def stamp(self):
        if not self.o["stamps"]: return
        e = self.e
        e.force_wait("s_waitcnt lgkmcnt(0)")
        e(f"s_memtime {s(S_ST,2)}")
        e.force_wait("s_waitcnt lgkmcnt(0)")
        e(f"s_sub_u32 {s(S_ST)}, {s(S_ST)}, {s(S_ST+2)}")
        e(f"v_mov_b32 {v(self.vst)}, {s(S_ST)}")
        e(f"v_accvgpr_write_b32 {a(224+self.nst)}, {v(self.vst)}")
        self.nst += 1

    def srd(self, d, p, size):
        e = self.e
        e(f"s_mov_b64 {s(d,2)}, {s(p,2)}")

    def poll(self, name, vaddr, srd, vdst, target_s):
        e = self.e
        lr, lo = f"L_{name}_retry", f"L_{name}_ok"
        e(f"v_cmp_ne_u32 vcc, {target_s}, {v(vdst)}")
        e(f"s_cbranch_vccnz {lr}")
        e.label(lo)
        def out():
            e.label(lr)
            e.fence_hazards()
            e(f"s_mov_b32 {s(S_CNT)}, 0")
            e.label(lr + "_l")
            e.raw(f"    s_sleep 2")
            e.raw(f"    buffer_load_dword {v(vdst)}, {v(vaddr)}, {s(srd,4)}, 0 offen sc1")
            e.raw(f"    s_add_u32 {s(S_CNT)}, {s(S_CNT)}, 1")
            e.raw(f"    s_waitcnt vmcnt(0)")
            e.raw(f"    v_cmp_ne_u32 vcc, {target_s}, {v(vdst)}")
            e.raw(f"    s_cbranch_vccz {lo}")
            e.raw(f"    s_cmp_lt_u32 {s(S_CNT)}, 0x40000")
            e.raw(f"    s_cbranch_scc1 {lr}_l")
            e.raw(f"    s_branch {lo}")
        self.tail.append(out)

    def prologue(self):
        e, V, o = self.e, self.V, self.o
        e(f"s_cmp_ge_u32 s2, 256\ns_cbranch_scc1 L_end")
        e(f"s_load_dwordx16 {s(SP,16)}, s[0:1], 0")
        e(f"s_load_dwordx4 {s(SP+16,4)}, s[0:1], 64")
        e(f"s_load_dwordx2 {s(SP+20,2)}, s[0:1], 80")
        if o["stamps"]:
            self.vst = V.alloc(1)
            e(f"s_memtime {s(S_ST+2,2)}")
        t0, t1, t2 = V.alloc(1), V.alloc(1), V.alloc(1)
        e(f"v_lshrrev_b32 {v(t0)}, 6, v0\nv_and_b32 v0, 63, v0")
        e(f"v_readfirstlane_b32 {s(S_W)}, {v(t0)}")
        e(f"s_lshr_b32 {s(S_T0)}, s2, 3")
        e(f"s_lshl_b32 {s(S_WV)}, {s(S_T0)}, 2\ns_add_u32 {s(S_WV)}, {s(S_WV)}, {s(S_W)}")
        if o["codepf"]:
            self.vpf = V.alloc(1)
            e(f"s_getpc_b64 s[4:5]")
            e.label("L_pc")
            e(f"v_and_b32 {v(t0)}, 3, v0\ns_lshl_b32 {s(S_T1)}, {s(S_WV)}, 9\nv_lshl_add_u32 {v(t0)}, {v(t0)}, 7, {s(S_T1)}")
            e(f"s_mov_b32 {s(S_T1)}, L_hot_end - L_pc - 4\nv_min_u32 {v(t0)}, {s(S_T1)}, {v(t0)}\nv_and_b32 {v(t0)}, -4, {v(t0)}")
            e(f"global_load_dword {v(self.vpf)}, {v(t0)}, s[4:5]")
        e(f"s_and_b32 {s(S_T1)}, s2, 1\ns_lshl_b32 {s(S_R)}, {s(S_T1)}, 3\ns_and_b32 {s(S_T1)}, {s(S_T0)}, 7\ns_add_u32 {s(S_R)}, {s(S_R)}, {s(S_T1)}")
        e(f"s_bfe_u32 {s(S_J)}, s2, 0x20001\ns_lshl_b32 {s(S_J)}, {s(S_J)}, 2\ns_lshr_b32 {s(S_T1)}, {s(S_T0)}, 3\ns_add_u32 {s(S_J)}, {s(S_J)}, {s(S_T1)}")
        if o["rot"]:
            e(f"s_lshl_b32 {s(S_ROT)}, {s(S_J)}, 1\ns_add_u32 {s(S_ROT)}, {s(S_ROT)}, {s(S_R)}\ns_and_b32 {s(S_ROT)}, {s(S_ROT)}, 7")
        else:
            e(f"s_mov_b32 {s(S_ROT)}, 0")
        e(f"s_lshl_b32 {s(S_GB)}, {s(S_R)}, 2\ns_add_u32 {s(S_GB)}, {s(S_GB)}, {s(S_W)}")
        self.vxa = vxa = V.alloc(4, 1)
        e(f"v_lshrrev_b32 {v(t0)}, 3, v0\ns_lshl_b32 {s(S_T1)}, {s(S_GB)}, 15\nv_lshl_add_u32 {v(t0)}, {v(t0)}, 10, {s(S_T1)}")
        e(f"v_and_b32 {v(t1)}, 7, v0\nv_lshrrev_b32 {v(t2)}, 4, v0\nv_xor_b32 {v(t1)}, {v(t1)}, {v(t2)}")
        e(f"v_lshl_add_u32 {v(vxa)}, {v(t1)}, 4, {v(t0)}")
        e(f"v_xor_b32 {v(vxa+1)}, 64, {v(vxa)}\nv_add_u32 {v(vxa+1)}, 7168, {v(vxa+1)}")
        e(f"v_add_u32 {v(vxa+2)}, {2*7168}, {v(vxa)}\nv_add_u32 {v(vxa+3)}, {2*7168}, {v(vxa+1)}")
        self.vqa = vqa = V.alloc(1)
        self.vrow = vrow = V.alloc(1)
        e(f"v_lshrrev_b32 {v(vrow)}, 2, v0\ns_lshl_b32 {s(S_T1)}, {s(S_W)}, 4\nv_add_u32 {v(vrow)}, {s(S_T1)}, {v(vrow)}")
        e(f"v_and_b32 {v(t1)}, 3, v0\nv_lshlrev_b32 {v(t1)}, 4, {v(t1)}\nv_mul_u32_u24 {v(t0)}, 3072, {v(vrow)}")
        e(f"s_lshl_b32 {s(S_T1)}, {s(S_J)}, 6\nv_add3_u32 {v(vqa)}, {v(t0)}, {v(t1)}, {s(S_T1)}")
        e(f"s_lshl_b32 {s(S_MX)}, {s(S_W)}, 12\ns_mul_i32 {s(S_MW)}, {s(S_W)}, 3072")
        for d, size in ((SX, 2048*1024), (SWQ, 512*3072), (SWS, WS_USED), (SGW, 1024)):
            e(f"s_mov_b32 {s(d+2)}, {size}\ns_mov_b32 {s(d+3)}, 0x20000")
        self.vl16 = vl16 = V.alloc(1)
        e(f"v_lshlrev_b32 {v(vl16)}, 4, v0")
        e.force_wait("s_waitcnt lgkmcnt(0)")
        e(f"s_mov_b64 {s(SX,2)}, {s(SP,2)}\ns_mov_b64 {s(SWQ,2)}, {s(SP+2,2)}")
        self.stamp()
        for ins in self.dma_chunk(0): e(ins, tag="c0")
        e(f"s_mov_b64 {s(SWS,2)}, {s(SP+20,2)}\ns_mov_b64 {s(SGW,2)}, {s(SP+14,2)}")
        e(f"s_lshl_b32 {s(S_T1)}, {s(S_W)}, 10\ns_add_u32 m0, {s(S_T1)}, {GWB}")
        e(f"s_cmp_lt_u32 {s(S_W)}, 2\ns_cselect_b32 {s(S_T1)}, 0, {OOB}\nv_or_b32 {v(t0)}, {s(S_T1)}, {v(vl16)}")
        e(f"s_cmp_eq_u32 {s(S_W)}, 3\ns_cselect_b32 {s(S_T1)}, {ZB}, m0\ns_mov_b32 m0, {s(S_T1)}")
        e(f"buffer_load_dwordx4 {v(t0)}, {s(SGW,4)}, 0 offen lds", tag="c0")
        self.vz4 = vz4 = V.alloc(4, 2)
        for i in range(4): e(f"v_mov_b32 {v(vz4+i)}, 0")
        e(f"s_or_b32 {s(S_T1)}, {s(S_J)}, {s(S_W)}\ns_cmp_eq_u32 {s(S_T1)}, 0\ns_cselect_b32 {s(S_T2)}, 0, {OOB}")
        e(f"s_lshl_b32 {s(S_T1)}, {s(S_R)}, 12\ns_add_u32 {s(S_T1)}, {s(S_T1)}, {FLAGOFF}\ns_or_b32 {s(S_T1)}, {s(S_T1)}, {s(S_T2)}")
        e(f"v_and_b32 {v(t0)}, 31, v0\nv_lshl_add_u32 {v(t0)}, {v(t0)}, 7, {s(S_T1)}")
        e(f"buffer_store_dwordx4 {v(vz4,4)}, {v(t0)}, {s(SWS,4)}, 0 offen sc1", tag="c0")
        self.vdb = vdb = V.alloc(1)
        e(f"s_lshl_b32 {s(S_T1)}, {s(S_R)}, 2\ns_or_b32 {s(S_T1)}, {s(S_T1)}, {s(S_T2)}\nv_mov_b32 {v(vdb)}, {s(S_T1)}")
        for c in range(1, o["look"]):
            for ins in self.dma_chunk(c): e(ins, tag=f"c{c}")
        e(f"s_sub_u32 {s(SWG)}, {s(SP+8)}, {BIAS}\ns_subb_u32 {s(SWG+1)}, {s(SP+9)}, 0")
        e(f"s_sub_u32 {s(SWU)}, {s(SP+10)}, {BIAS}\ns_subb_u32 {s(SWU+1)}, {s(SP+11)}, 0")
        e(f"s_mov_b64 {s(SWD,2)}, {s(SP+12,2)}\ns_mov_b64 {s(SWO,2)}, {s(SP+4,2)}\ns_mov_b64 {s(SOUT,2)}, {s(SP+16,2)}\ns_mov_b64 {s(SDBG,2)}, {s(SP+18,2)}")
        for d, size in ((SWG, 512*2752+BIAS), (SWU, 512*2752+BIAS), (SWD, 1376*1024), (SWO, 512*1024), (SOUT, 2048*1024), (SDBG, 256)):
            e(f"s_mov_b32 {s(d+2)}, {size}\ns_mov_b32 {s(d+3)}, 0x20000")
        self.vfa = vfa = V.alloc(3, 1)
        self.S_PO = S_PO = 85
        e(f"s_lshr_b32 {s(S_T1)}, {s(S_J)}, 2\ns_mul_i32 {s(S_T1)}, {s(S_T1)}, 11\ns_and_b32 {s(S_T2)}, {s(S_J)}, 3\ns_mul_i32 {s(S_T3)}, {s(S_T2)}, 3\ns_add_u32 {s(S_T1)}, {s(S_T1)}, {s(S_T3)}")
        e(f"s_cmp_eq_u32 {s(S_J)}, 15\ns_subb_u32 {s(S_PO)}, {s(S_T1)}, 0")
        e(f"s_cmp_eq_u32 {s(S_T2)}, 3\ns_cselect_b32 {s(S_T3)}, {OOB}, 0\ns_cmp_eq_u32 {s(S_J)}, 14\ns_cselect_b32 {s(95)}, {OOB}, {s(S_T3)}")
        self.S_NP2 = 95
        e(f"v_mul_u32_u24 {v(t0)}, 2752, {v(vrow)}\ns_lshl_b32 {s(S_T1)}, {s(S_PO)}, 6\ns_add_u32 {s(S_T1)}, {s(S_T1)}, {BIAS}\nv_add3_u32 {v(vfa)}, {v(t0)}, {v(t1)}, {s(S_T1)}")
        e(f"v_subrev_u32 {v(vfa+1)}, {1024-64}, {v(vfa)}\nv_subrev_u32 {v(vfa+2)}, {2*(1024-64)}, {v(vfa)}\nv_or_b32 {v(vfa+2)}, {s(self.S_NP2)}, {v(vfa+2)}")
        V.release(vrow, 1)
        self.vwr = vwr = V.alloc(3, 1)
        e(f"v_lshrrev_b32 {v(t0)}, 5, v0\nv_lshlrev_b32 {v(t0)}, 9, {v(t0)}\nv_bfe_u32 {v(t1)}, v0, 2, 2\nv_lshl_add_u32 {v(t0)}, {v(t1)}, 6, {v(t0)}")
        e(f"v_bfe_u32 {v(t1)}, v0, 4, 1\nv_lshl_add_u32 {v(t0)}, {v(t1)}, 5, {v(t0)}")
        e(f"v_and_b32 {v(t1)}, 1, v0\nv_lshl_add_u32 {v(t0)}, {v(t1)}, 4, {v(t0)}\nv_bfe_u32 {v(t1)}, v0, 1, 1\nv_lshl_add_u32 {v(vwr)}, {v(t1)}, 3, {v(t0)}")
        e(f"v_add_u32 {v(vwr+1)}, {2*SLOT}, {v(vwr)}\nv_add_u32 {v(vwr+2)}, {4*SLOT}, {v(vwr)}")
        self.vxr = vxr = V.alloc(12, 1)
        e(f"v_and_b32 {v(t0)}, 31, v0\nv_lshl_add_u32 {v(t0)}, {v(t0)}, 7, {s(S_MX)}\nv_bfe_u32 {v(t1)}, v0, 1, 3\nv_lshrrev_b32 {v(t2)}, 5, v0\nv_xor_b32 {v(t1)}, {v(t1)}, {v(t2)}")
        e(f"v_lshl_add_u32 {v(vxr)}, {v(t1)}, 4, {v(t0)}")
        for st in range(1, 4): e(f"v_xor_b32 {v(vxr+st)}, {32*st}, {v(vxr)}")
        for win in (1, 2):
            for st in range(4): e(f"v_add_u32 {v(vxr+4*win+st)}, {2*SLOT*win}, {v(vxr+st)}")
        self.vgr = vgr = V.alloc(1)
        e(f"s_lshl_b32 {s(S_T1)}, {s(S_ROT)}, 7\ns_add_u32 {s(S_T1)}, {s(S_T1)}, {GWB}\nv_lshl_add_u32 {v(t0)}, {v(t2)}, 4, {s(S_T1)}")
        e(f"v_and_b32 {v(t1)}, 27, v0\nv_cmp_eq_u32 vcc, 0, {v(t1)}\nv_mov_b32 {v(vgr)}, {ZB}\nv_cndmask_b32 {v(vgr)}, {v(vgr)}, {v(t0)}, vcc")
        if o["fmap"] == "4x8":
            e(f"s_and_b32 {s(S_RB)}, s2, 7\ns_lshl_b32 {s(S_RB)}, {s(S_RB)}, 2\ns_and_b32 {s(S_T1)}, {s(S_T0)}, 3\ns_add_u32 {s(S_RB)}, {s(S_RB)}, {s(S_T1)}\ns_lshr_b32 {s(S_CB)}, {s(S_T0)}, 2")
        else:
            e(f"s_lshl_b32 {s(S_RB)}, {s(S_R)}, 1\ns_lshr_b32 {s(S_T1)}, {s(S_J)}, 3\ns_add_u32 {s(S_RB)}, {s(S_RB)}, {s(S_T1)}\ns_and_b32 {s(S_CB)}, {s(S_J)}, 7")
        e(f"s_mov_b32 {s(S_MA)}, 0xffff\ns_mov_b32 {s(S_MA+1)}, 0xffff\ns_mov_b32 {s(S_MB)}, 0xffff0000\ns_mov_b32 {s(S_MB+1)}, 0xffff0000")
        self.t0, self.t1, self.t2 = t0, t1, t2

    def dma_chunk(self, c):
        L = []
        pre = f"s_add_u32 {s(S_T3)}, {s(S_ROT)}, {c % 8}\ns_and_b32 {s(S_T3)}, {s(S_T3)}, 7\n"
        if c < 8:
            L.append(pre + f"s_lshl_b32 {s(S_XO)}, {s(S_T3)}, 7\ns_add_u32 m0, {s(S_MX)}, {phys(c)}\ns_mul_i32 {s(S_WO)}, {s(S_T3)}, {64*3072}\n"
                     f"buffer_load_dwordx4 {v(self.vxa)}, {s(SX,4)}, {s(S_XO)} offen lds")
            for t in range(1, 4):
                L.append(f"buffer_load_dwordx4 {v(self.vxa+t)}, {s(SX,4)}, {s(S_XO)} offen offset:{t*1024} lds")
            for b in range(3):
                p = f"s_add_u32 m0, {s(S_MW)}, {phys(c)+16384}\n" if b == 0 else ""
                L.append(p + f"buffer_load_dwordx4 {v(self.vqa)}, {s(SWQ,4)}, {s(S_WO)} offen offset:{b*1024} lds")
        else:
            for m, srd in enumerate((SWG, SWU)):
                for p in range(3):
                    q = ""
                    if p == 0:
                        if m == 0: q = pre + f"s_lshl_b32 {s(S_XO)}, {s(S_MW)}, 1\ns_add_u32 m0, {s(S_XO)}, {phys(c)}\ns_mul_i32 {s(S_WO)}, {s(S_T3)}, {64*2752}\n"
                        else: q = f"s_add_u32 m0, {s(S_XO)}, {phys(c)+3072}\n"
                    L.append(q + f"buffer_load_dwordx4 {v(self.vfa+p)}, {s(srd,4)}, {s(S_WO)} offen offset:{p*1024} lds")
        return L

    def stage1(self):
        e, V, o = self.e, self.V, self.o
        look = o["look"]
        accq = V.alloc(64, 4)
        accf = V.alloc(96, 4)
        NR = 5
        ring = V.alloc(4*NR, 4)
        self.accq, self.accf = accq, accf
        items = []
        for c in range(16):
            for st in range(4):
                for t in range(4 if c < 8 else 6):
                    items.append((c, st, t))
        LEAD = 3
        def reads(idx):
            c, st, t = items[idx]
            r = ring + 4*(idx % NR)
            ps = (c + 2) % NSLOT
            win, base = ps // 2, (ps % 2) * SLOT
            L = []
            if c < 8 and t == 0:
                L.append(f"ds_read_b128 {a(16*c+4*st,4)}, {v(self.vxr+4*win+st)} offset:{base}")
            if c < 8 and t == 3:
                L.append(f"ds_read_b128 {v(r,4)}, {v(self.vgr)} offset:{c*128+st*32}")
            else:
                off = base + (16384 + st*3072 if c < 8 else st*6144) + t*1024
                L.append(f"ds_read_b64_tr_b16 {v(r,2)}, {v(self.vwr+win)} offset:{off}")
                L.append(f"ds_read_b64_tr_b16 {v(r+2,2)}, {v(self.vwr+win)} offset:{off+256}")
            return L
        def mfma(idx):
            c, st, t = items[idx]
            r = ring + 4*(idx % NR)
            x = a(16*(c % 8)+4*st, 4)
            d = (accq if c < 8 else accf) + 16*t
            cin = "0" if (c % 8 == 0 and st == 0) else v(d, 16)
            if c < 8 and t == 2: return f"{MF} {v(d,16)}, {x}, {v(r,4)}, {cin}"
            return f"{MF} {v(d,16)}, {v(r,4)}, {x}, {cin}"
        def barrier(c):
            e.wait_tag(f"c{c}")
            e("s_barrier")
        fill = []
        dq = []
        def drain(q):
            if q:
                f = q.pop(0)
                if callable(f): f()
                else: e(f[0], tag=f[1])
        self.fill = fill
        barrier(0)
        self.stamp()
        vone = V.alloc(1); self.vone = vone
        e(f"v_mov_b32 {v(vone)}, 1")
        e(f"buffer_store_dword {v(vone)}, {v(self.vdb)}, {s(SDBG,4)}, 0 offen sc1")
        for ins in self.dma_chunk(look): dq.append((ins, f"c{look}"))
        for i in range(LEAD):
            for r_ in reads(i): e(r_)
        k = 0
        for idx, (c, st, t) in enumerate(items):
            nxt = idx + LEAD
            if nxt < len(items) and items[nxt][0] != items[nxt-1][0]:
                while dq: drain(dq)
                cn = items[nxt][0]
                barrier(cn)
                if cn + look < 16:
                    for ins in self.dma_chunk(cn + look): dq.append((ins, f"c{cn+look}"))
                self.chunk_hook(cn)
                k = 0
            e(mfma(idx))
            if nxt < len(items):
                for r_ in reads(nxt): e(r_)
            per = 2 if c < 8 else 3
            if dq and k % per == 0: drain(dq)
            else: drain(fill)
            k += 1
            if c == 8 and st == 0 and t == 5:
                self.stamp()
                self.q_epilogue_queue()
        while fill: drain(fill)
        V.release(ring, 4*NR)
        V.release(self.vxa, 4); V.release(self.vqa, 1); V.release(self.vfa, 3); V.release(self.vwr, 3); V.release(self.vxr, 12); V.release(self.vgr, 1)

    def chunk_hook(self, cn):
        e, V, fill = self.e, self.V, self.fill
        if cn == 5:
            self.vinit_a = V.alloc(1); self.vinit = V.alloc(1)
            fill.append((f"v_and_b32 {v(self.vinit_a)}, 15, v0\nv_lshlrev_b32 {v(self.vinit_a)}, 2, {v(self.vinit_a)}\n"
                         f"buffer_load_dword {v(self.vinit)}, {v(self.vinit_a)}, {s(SDBG,4)}, 0 offen sc1", None))
        if cn == 11:
            def pub():
                e.wait_tag("kvst")
                self.poll("init", self.vinit_a, SDBG, self.vinit, "1")
                t0 = self.t0
                e(f"s_lshl_b32 {s(S_T1)}, {s(S_R)}, 12\ns_lshr_b32 {s(S_T2)}, {s(S_J)}, 2\ns_lshl_b32 {s(S_T2)}, {s(S_T2)}, 7\ns_add_u32 {s(S_T1)}, {s(S_T1)}, {s(S_T2)}")
                e(f"s_and_b32 {s(S_T2)}, {s(S_J)}, 3\ns_lshl_b32 {s(S_T2)}, {s(S_T2)}, 2\ns_add_u32 {s(S_T1)}, {s(S_T1)}, {s(S_T2)}\ns_add_u32 {s(S_T1)}, {s(S_T1)}, {FLAGOFF+16*128}")
                e(f"v_mov_b32 {v(t0)}, {s(S_T1)}\ns_mov_b64 exec, 1")
                e(f"buffer_atomic_add {v(self.vone)}, {v(t0)}, {s(SWS,4)}, 0 offen sc1")
                e(f"s_mov_b64 exec, -1")
                e(f"s_lshr_b32 {s(S_T2)}, {s(S_W)}, 1\ns_sub_u32 {s(S_T2)}, 2, {s(S_T2)}\ns_lshl_b32 {s(S_T3)}, {s(S_T2)}, 12\ns_sub_u32 {s(S_T1)}, {s(S_T1)}, {s(S_T3)}")
                e(f"s_cmp_ge_u32 {s(S_R)}, {s(S_T2)}\ns_cselect_b32 {s(S_T1)}, {s(S_T1)}, {OOB}\ns_cselect_b32 {s(3)}, 4, 0\nv_mov_b32 {v(self.vinit_a)}, {s(S_T1)}")
            fill.append(pub)
        if cn == 12 and self.o["touch"]:
            fill.append(self.touch_final_w)
        if cn == 13:
            fill.append((f"buffer_load_dword {v(self.vinit)}, {v(self.vinit_a)}, {s(SWS,4)}, 0 offen sc1", None))
        if cn == 15:
            def halo():
                self.poll("kv", self.vinit_a, SWS, self.vinit, "s3")
                t0 = self.t0
                e(f"s_lshl_b32 {s(S_T1)}, {s(S_J)}, 6\ns_lshl_b32 {s(S_T2)}, {s(S_R)}, 2\ns_add_u32 {s(S_T1)}, {s(S_T1)}, {s(S_T2)}\ns_lshl_b32 {s(S_T2)}, {s(S_W)}, 1\ns_add_u32 {s(S_T1)}, {s(S_T1)}, {s(S_T2)}")
                e(f"s_sub_u32 {s(S_T1)}, {s(S_T1)}, 8\ns_lshl_b32 {s(S_T1)}, {s(S_T1)}, 12\ns_add_u32 {s(S_T1)}, {s(S_T1)}, {KVOFF}\ns_cmp_eq_u32 s3, 0\ns_cselect_b32 {s(S_T1)}, {OOB}, {s(S_T1)}")
                e(f"v_add_u32 {v(t0)}, {s(S_T1)}, {v(self.vl16)}\ns_lshl_b32 {s(S_T2)}, {s(S_W)}, 13\ns_add_u32 m0, {s(S_T2)}, {KVB}\ns_mov_b32 {s(S_T1)}, 4096")
            fill.append(halo)
            for u in range(2):
                for t in range(4):
                    p = f"s_add_u32 m0, m0, 4096\n" if (u == 1 and t == 0) else ""
                    so = "0" if u == 0 else s(S_T1)
                    fill.append((p + f"buffer_load_dwordx4 {v(self.t0)}, {s(SWS,4)}, {so} offen offset:{t*1024} sc1 lds", "halo"))

    def touch_final_w(self):
        e, V = self.e, self.V
        t1, t2 = self.t1, self.t2
        self.vtouch = V.alloc(3, 1)
        if self.o["fmap"] == "4x8":
            e(f"s_mul_i32 {s(S_T1)}, {s(S_WV)}, {86*128}\nv_lshl_add_u32 {v(t1)}, v0, 7, {s(S_T1)}")
            e(f"buffer_load_dword {v(self.vtouch)}, {v(t1)}, {s(SWD,4)}, 0 offen")
            e(f"v_min_u32 {v(t2)}, 21, v0\ns_add_u32 {s(S_T1)}, {s(S_T1)}, {64*128}\nv_lshl_add_u32 {v(t2)}, {v(t2)}, 7, {s(S_T1)}")
            e(f"buffer_load_dword {v(self.vtouch+1)}, {v(t2)}, {s(SWD,4)}, 0 offen")
            e(f"v_and_b32 {v(t1)}, 31, v0\ns_lshl_b32 {s(S_T1)}, {s(S_WV)}, 12\nv_lshl_add_u32 {v(t1)}, {v(t1)}, 7, {s(S_T1)}")
            e(f"buffer_load_dword {v(self.vtouch+2)}, {v(t1)}, {s(SWO,4)}, 0 offen")
        else:
            e(f"s_lshr_b32 {s(S_T2)}, {s(S_CB)}, 2\ns_lshl_b32 {s(S_T2)}, {s(S_T2)}, 9")
            e(f"v_min_u32 {v(t2)}, 43, v0\nv_lshrrev_b32 {v(t1)}, 2, {v(t2)}\nv_and_b32 {v(t2)}, 3, {v(t2)}\nv_lshlrev_b32 {v(t2)}, 7, {v(t2)}\nv_lshl_add_u32 {v(t1)}, {v(t1)}, 10, {v(t2)}")
            e(f"s_mul_i32 {s(S_T1)}, {s(S_WV)}, {11*1024}\ns_add_u32 {s(S_T1)}, {s(S_T1)}, {s(S_T2)}")
            e(f"buffer_load_dword {v(self.vtouch)}, {v(t1)}, {s(SWD,4)}, {s(S_T1)} offen")
            e(f"v_min_u32 {v(t1)}, {3*1024+384}, {v(t1)}\ns_lshl_b32 {s(S_T1)}, {s(S_WV)}, 12\ns_add_u32 {s(S_T1)}, {s(S_T1)}, {s(S_T2)}")
            e(f"buffer_load_dword {v(self.vtouch+1)}, {v(t1)}, {s(SWO,4)}, {s(S_T1)} offen")

    def q_epilogue_queue(self):
        e, V, fill = self.e, self.V, self.fill
        A = self.accq
        self.vq = vq = V.alloc(8, 4)
        kv = V.alloc(16, 4)
        self.vg = V.alloc(2, 2)
        self.vinv = V.alloc(2, 2)
        vad, vld = V.alloc(1), V.alloc(1)
        L = []
        L.append(f"s_lshl_b32 {s(S_T1)}, {s(S_J)}, 6\ns_add_u32 {s(S_T1)}, {s(S_T1)}, {s(S_GB)}\ns_lshl_b32 {s(S_T1)}, {s(S_T1)}, 12\nv_add_u32 {v(vad)}, {s(S_T1)}, {v(self.vl16)}")
        L.append(f"s_add_u32 {s(S_T1)}, {s(S_MX)}, {KVB+8*4096}\nv_add_u32 {v(vld)}, {s(S_T1)}, {v(self.vl16)}")
        for b in range(4):
            src = A + 16 + 8*b
            L.append("\n".join(f"v_cvt_pk_bf16_f32 {v(kv+4*b+i)}, {v(src+2*i)}, {v(src+2*i+1)}" for i in range(4)))
            L.append((f"buffer_store_dwordx4 {v(kv+4*b,4)}, {v(vad)}, {s(SWS,4)}, 0 offen offset:{KVOFF+b*1024} sc1", "kvst"))
            L.append(f"ds_write_b128 {v(vld)}, {v(kv+4*b,4)} offset:{b*1024}")
        c = 0.25 * math.log2(math.e)
        L.append(f"s_mov_b32 {s(S_C0)}, {f2u(c):#x}\ns_mov_b32 {s(S_C0+1)}, {f2u(c):#x}")
        for i in range(0, 8, 2):
            L.append("\n".join(f"v_pk_mul_f32 {v(A+2*k,2)}, {v(A+2*k,2)}, {s(S_C0,2)}\nv_cvt_pk_bf16_f32 {v(vq+k)}, {v(A+2*k)}, {v(A+2*k+1)}" for k in (i, i+1)))
        z, g, inv = A + 48, self.vg, self.vinv
        L.append(f"v_cvt_pk_bf16_f32 {v(z)}, {v(z)}, {v(z)}\nv_and_b32 {v(z)}, 0xffff0000, {v(z)}\nv_mul_f32 {v(z)}, {f2u(-math.log2(math.e)):#x}, {v(z)}\nv_exp_f32 {v(z)}, {v(z)}")
        L.append(f"v_add_f32 {v(z)}, 1.0, {v(z)}\nv_rcp_f32 {v(z)}, {v(z)}")
        L.append(f"v_cvt_pk_bf16_f32 {v(z)}, {v(z)}, {v(z)}\nv_and_b32 {v(g)}, 0xffff0000, {v(z)}\nv_sub_f32 {v(z)}, 1.0, {v(g)}\nv_cvt_pk_bf16_f32 {v(z)}, {v(z)}, {v(z)}")
        L.append(f"v_and_b32 {v(z)}, 0xffff0000, {v(z)}\nv_rcp_f32 {v(z)}, {v(z)}")
        L.append(f"v_min_f32 {v(inv)}, {f2u(2.0**120):#x}, {v(z)}\nv_mov_b32 {v(inv+1)}, {v(inv)}\nv_mov_b32 {v(g+1)}, {v(g)}")
        def rel():
            V.release(kv, 16); V.release(vad, 1); V.release(vld, 1); V.release(A, 64)
        for x in L: fill.append(x if isinstance(x, tuple) else (x, None))
        fill.append(rel)

    def wf_setup(self):
        e, V = self.e, self.V
        t0, t1 = self.t0, self.t1
        self.vwa = vwa = V.alloc(4, 1)
        e(f"v_lshrrev_b32 {v(t1)}, 3, v0\nv_lshlrev_b32 {v(t1)}, 10, {v(t1)}\ns_lshl_b32 {s(S_T2)}, {s(S_CB)}, 7\nv_add_u32 {v(vwa)}, {s(S_T2)}, {v(t1)}")
        e(f"v_bfe_u32 {v(t1)}, v0, 4, 1\nv_lshlrev_b32 {v(t1)}, 2, {v(t1)}\nv_and_b32 {v(vwa+1)}, 7, v0\nv_xor_b32 {v(t1)}, {v(t1)}, {v(vwa+1)}\nv_lshl_add_u32 {v(vwa)}, {v(t1)}, 4, {v(vwa)}")
        for t in range(1, 4): e(f"v_add_u32 {v(vwa+t)}, {7168*t}, {v(vwa)}")
        e(f"s_mul_i32 {s(S_RING)}, {s(S_W)}, {WRING}")
        self.vwf = vwf = V.alloc(2, 1)
        e(f"v_lshrrev_b32 {v(t1)}, 5, v0\nv_lshlrev_b32 {v(t1)}, 10, {v(t1)}\nv_bfe_u32 {v(vwf)}, v0, 2, 2\nv_lshl_add_u32 {v(t1)}, {v(vwf)}, 7, {v(t1)}")
        e(f"v_bfe_u32 {v(vwf)}, v0, 3, 1\nv_lshl_add_u32 {v(t1)}, {v(vwf)}, 6, {v(t1)}\nv_bfe_u32 {v(vwf)}, v0, 4, 1\nv_lshl_add_u32 {v(t1)}, {v(vwf)}, 5, {v(t1)}")
        e(f"v_and_b32 {v(vwf)}, 3, v0\nv_lshl_add_u32 {v(t1)}, {v(vwf)}, 3, {v(t1)}\nv_xor_b32 {v(vwf+1)}, 64, {v(t1)}")
        e(f"v_add_u32 {v(vwf)}, {s(S_RING)}, {v(t1)}\nv_add_u32 {v(vwf+1)}, {s(S_RING)}, {v(vwf+1)}")
        e(f"s_mul_i32 {s(S_XO)}, {s(S_W)}, {22*16*1024}\ns_lshl_b32 {s(S_WO)}, {s(S_W)}, 17")

    def wf_dma(self, g):
        L = []
        srd, so, k = (SWD, S_XO, g) if g < 11 else (SWO, S_WO, g - 11)
        for t in range(4):
            p = f"s_add_u32 m0, {s(S_RING)}, {(g % 6)*4096}\ns_add_u32 {s(S_T3)}, {s(so)}, {k*32768}\n" if t == 0 else ""
            L.append((p + f"buffer_load_dwordx4 {v(self.vwa+t)}, {s(srd,4)}, {s(S_T3)} offen offset:{t*1024} lds", f"w{g}"))
        return L

    def wf_reads(self, g, dst):
        L = []
        for u in range(2):
            for ct in range(2):
                off = (g % 6)*4096 + u*2048
                r = dst + 8*u + 4*ct
                L.append(f"ds_read_b64_tr_b16 {a(r,2)}, {v(self.vwf+ct)} offset:{off}")
                L.append(f"ds_read_b64_tr_b16 {a(r+2,2)}, {v(self.vwf+ct)} offset:{off+512}")
        return L

    def f_epilogue(self):
        e, V = self.e, self.V
        A = self.accf
        self.stamp()
        self.wf_setup()
        e.wait_all(vm=False, lg=True)
        e("s_barrier")
        fill = []
        for g in range(6): fill += self.wf_dma(g)
        vad = V.alloc(2, 1)
        out = V.alloc(8, 4)
        e(f"s_mul_i32 {s(S_T1)}, {s(S_GB)}, 86\ns_lshl_b32 {s(S_T2)}, {s(self.S_PO)}, 1\ns_add_u32 {s(S_T1)}, {s(S_T1)}, {s(S_T2)}\ns_lshl_b32 {s(S_T1)}, {s(S_T1)}, 10\ns_add_u32 {s(S_T1)}, {s(S_T1)}, {HOFF}")
        e(f"v_add_u32 {v(vad)}, {s(S_T1)}, {v(self.vl16)}\nv_add_u32 {v(vad+1)}, 4096, {v(vad)}\nv_or_b32 {v(vad+1)}, {s(self.S_NP2)}, {v(vad+1)}")
        c = -math.log2(math.e)
        e(f"s_mov_b32 {s(S_C0)}, {f2u(c):#x}\ns_mov_b32 {s(S_C0+1)}, {f2u(c):#x}")
        inv = self.vinv
        for p in range(3):
            for half in range(2):
                G, U = A + 16*p + 8*half, A + 48 + 16*p + 8*half
                o_ = out + 4*half
                for i in range(4): e(f"v_pk_mul_f32 {v(G+2*i,2)}, {v(G+2*i,2)}, {s(S_C0,2)}")
                for i in range(8):
                    e(f"v_exp_f32 {v(G+i)}, {v(G+i)}")
                    if i in (2, 6) and fill: f = fill.pop(0); e(f[0], tag=f[1])
                for i in range(4): e(f"v_pk_fma_f32 {v(G+2*i,2)}, {v(G+2*i,2)}, {v(inv,2)}, {v(inv,2)}")
                for i in range(8):
                    e(f"v_rcp_f32 {v(G+i)}, {v(G+i)}")
                    if i in (2, 6) and fill: f = fill.pop(0); e(f[0], tag=f[1])
                for i in range(4): e(f"v_pk_mul_f32 {v(G+2*i,2)}, {v(G+2*i,2)}, {v(U+2*i,2)}")
                for i in range(4): e(f"v_cvt_pk_bf16_f32 {v(o_+i)}, {v(G+2*i)}, {v(G+2*i+1)}")
                st = 2*p + half
                ad, off = (vad, st*1024) if st < 4 else (vad+1, (st-4)*1024)
                e(f"buffer_store_dwordx4 {v(o_,4)}, {v(ad)}, {s(SWS,4)}, 0 offen offset:{off} sc1", tag="hst")
        for f in fill: e(f[0], tag=f[1])
        V.release(A, 96); V.release(vad, 2); V.release(out, 8); V.release(inv, 2)

    def attention(self):
        e, V, o = self.e, self.V, self.o
        t0, t1, t2 = self.t0, self.t1, self.t2
        self.stamp()
        md, mo, cz = V.alloc(16, 4), V.alloc(16, 4), V.alloc(16, 4)
        S = [V.alloc(16, 4), V.alloc(16, 4)]
        P = [V.alloc(8, 4), V.alloc(8, 4)]
        O = [V.alloc(16, 4), V.alloc(16, 4)]
        Kf = [V.alloc(4, 4) for _ in range(3)]
        Vf = [[V.alloc(8, 4) for _ in range(2)] for _ in range(2)]
        vkv = V.alloc(1)
        self.att = dict(md=md, mo=mo, cz=cz, S=S, P=P, O=O, Kf=Kf, Vf=Vf, vkv=vkv)
        NEG = f2u(-1.0e30)
        e(f"s_add_u32 {s(S_T1)}, {s(S_MX)}, {KVB}\nv_add_u32 {v(vkv)}, {s(S_T1)}, {v(self.vl16)}")
        e(f"v_and_b32 {v(t0)}, 31, v0\nv_lshrrev_b32 {v(t1)}, 5, v0\nv_lshlrev_b32 {v(t1)}, 2, {v(t1)}\nv_sub_u32 {v(t0)}, {v(t0)}, {v(t1)}\nv_mov_b32 {v(t1)}, {NEG:#x}\nv_mov_b32 {v(t2)}, 0")
        for i in range(16):
            e(f"v_cmp_le_i32 vcc, {8*(i>>2)+(i&3)}, {v(t0)}\nv_mov_b32 {v(cz+i)}, 0")
            e(f"v_mov_b32 {v(Vf[i>>3][0]+(i&7))}, 0x3f803f80")
            e(f"v_cndmask_b32 {v(md+i)}, {v(t1)}, {v(t2)}, vcc\nv_cndmask_b32 {v(mo+i)}, {v(t2)}, {v(t1)}, vcc")
            e(f"v_mov_b32 {v(Vf[i>>3][1]+(i&7))}, 0x3f803f80")
        e.wait_tag("halo"); e.wait_all(vm=False, lg=True)
        e("s_barrier")
        self.stamp()
        items = [(8 - t//2, t & 1) for t in range(18)]
        def kread(t):
            b, hd = items[t]
            return f"ds_read_b128 {v(Kf[t%3],4)}, {v(vkv)} offset:{b*4096+hd*1024}"
        def vread(t):
            b, hd = items[t]
            r = Vf[hd][(t >> 1) & 1]
            m = S_MA if hd == 0 else S_MB
            return (f"s_mov_b64 exec, {s(m,2)}\nds_read_b128 {v(r,4)}, {v(vkv)} offset:{b*4096+2048}\n"
                    f"ds_read_b128 {v(r+4,4)}, {v(vkv)} offset:{b*4096+3072}\ns_mov_b64 exec, -1")
        def qk(t):
            b, hd = items[t]
            C = md if b == 8 else (mo if b == 0 else cz)
            if hd == 0 and b < 8:
                lf, lb = f"L_fix_{b}", f"L_fixb_{b}"
                e(f"s_cmp_eq_u32 {s(S_GB)}, {7-b}\ns_cbranch_scc1 {lf}")
                e.label(lb)
                def out(lf=lf, lb=lb):
                    e.label(lf); e.fence_hazards()
                    for i in range(16): e.raw(f"    v_mov_b32 {v(cz+i)}, {NEG:#x}\n    v_mov_b32 {v(mo+i)}, {NEG:#x}")
                    e.raw(f"    s_nop 1\n    s_branch {lb}")
                self.tail.append(out)
            e(f"{MF} {v(S[t&1],16)}, {v(Kf[t%3],4)}, {v(self.vq+4*hd,4)}, {v(C,16)}")
        fill = []
        def add_group(g):
            def w(g=g): e.wait_tag(f"w{g}")
            fill.append(w)
            rs = self.wf_reads(g, 16*g)
            for k in range(0, 8, 2): fill.append((rs[k] + "\n" + rs[k+1], f"r{g}"))
            def w2(g=g): e.wait_tag(None, f"r{g}")
            fill.append(None)
            fill.append(w2)
            for x in self.wf_dma(g + 6): fill.append(x)
        self.vfl = vfl = V.alloc(2, 1)
        def pub_h():
            e.wait_tag("hst")
            e(f"s_lshl_b32 {s(S_T1)}, {s(S_R)}, 12\ns_lshr_b32 {s(S_T2)}, {s(S_W)}, 1\ns_lshl_b32 {s(S_T2)}, {s(S_T2)}, 9\ns_add_u32 {s(S_T1)}, {s(S_T1)}, {s(S_T2)}")
            e(f"s_lshr_b32 {s(S_T2)}, {s(S_J)}, 2\ns_lshl_b32 {s(S_T2)}, {s(S_T2)}, 7\ns_add_u32 {s(S_T1)}, {s(S_T1)}, {s(S_T2)}\ns_add_u32 s3, {s(S_T1)}, {FLAGOFF}")
            e(f"v_mov_b32 {v(vfl)}, s3\ns_mov_b64 exec, 1")
            e(f"buffer_atomic_add {v(self.vone)}, {v(vfl)}, {s(SWS,4)}, 0 offen sc1\ns_mov_b64 exec, -1")
            e(f"s_lshr_b32 {s(S_T1)}, {s(S_RB)}, 1\ns_lshl_b32 {s(S_T1)}, {s(S_T1)}, 12\ns_and_b32 {s(S_T2)}, {s(S_RB)}, 1\ns_lshl_b32 {s(S_T2)}, {s(S_T2)}, 9\ns_add_u32 {s(S_T1)}, {s(S_T1)}, {s(S_T2)}")
            e(f"s_lshl_b32 {s(S_T2)}, {s(S_W)}, 7\ns_add_u32 {s(S_T1)}, {s(S_T1)}, {s(S_T2)}\ns_add_u32 {s(S_T1)}, {s(S_T1)}, {FLAGOFF}\nv_mov_b32 {v(vfl)}, {s(S_T1)}")
        add_group(0); add_group(1)
        fill.append(pub_h)
        for g in range(2, 9): add_group(g)
        fill.append((f"buffer_load_dword {v(vfl+1)}, {v(vfl)}, {s(SWS,4)}, 0 offen sc1", None))
        nslots = 17 * 6
        per = len(fill) / nslots
        state = dict(acc=0.0)
        def slot():
            state["acc"] += per
            while state["acc"] >= 1.0 and fill:
                state["acc"] -= 1.0
                f = fill.pop(0)
                if f is None: continue
                if callable(f): f()
                else: e(f[0], tag=f[1])
        e(kread(0)); e(kread(1)); e(vread(0))
        qk(0)
        for t in range(18):
            b, hd = items[t]
            Sx, Px = S[t & 1], P[t & 1]
            if t + 2 < 18: e(kread(t + 2))
            if t + 1 < 18:
                e(vread(t + 1))
                qk(t + 1)
            vr = Vf[hd][(t >> 1) & 1]
            cin = "0" if t < 2 else v(O[hd], 16)
            for half in range(2):
                for i in range(8):
                    e(f"v_exp_f32 {v(Sx+8*half+i)}, {v(Sx+8*half+i)}")
                    if i in (1, 4): slot()
                for i in range(4): e(f"v_cvt_pk_bf16_f32 {v(Px+4*half+i)}, {v(Sx+8*half+2*i)}, {v(Sx+8*half+2*i+1)}")
                slot()
                if half == 1:
                    e(f"{MF} {v(O[hd],16)}, {v(vr,4)}, {v(Px,4)}, {cin}")
                    e(f"{MF} {v(O[hd],16)}, {v(vr+4,4)}, {v(Px+4,4)}, {v(O[hd],16)}")
        while fill:
            state["acc"] = 1.0; slot()
        self.stamp()
        l0, l1 = O[0] + 8, O[1]
        e(f"v_max3_f32 {v(t0)}, abs({v(O[0])}), abs({v(O[0]+1)}), abs({v(O[0]+2)})")
        regs = [O[0]+i for i in range(3, 8)] + [O[1]+8+i for i in range(8)]
        for k in range(0, 12, 2): e(f"v_max3_f32 {v(t0)}, {v(t0)}, abs({v(regs[k])}), abs({v(regs[k+1])})")
        e(f"v_max_f32 {v(t1)}, {v(l0)}, {v(l1)}\nv_mul_f32 {v(t1)}, {f2u(2.0**97):#x}, {v(t1)}\nv_max3_f32 {v(t0)}, {v(t0)}, abs({v(regs[12])}), {v(t1)}")
        e(f"v_min_f32 {v(t2)}, {v(l0)}, {v(l1)}\nv_add_f32 {v(t1)}, {v(l0)}, {v(l1)}")
        e(f"v_cmp_nlt_f32 vcc, {f2u(2.0**-30):#x}, {v(t2)}\ns_mov_b64 {s(S_C0,2)}, vcc")
        e(f"v_cmp_nlt_f32 vcc, 0, {v(t1)}\ns_or_b64 {s(S_C0,2)}, {s(S_C0,2)}, vcc")
        e(f"v_cmp_ngt_f32 vcc, {f2u(2.0**127):#x}, {v(t0)}\ns_or_b64 vcc, {s(S_C0,2)}, vcc")
        if o["force_slow"]: e("s_branch L_slow")
        else: e("s_cbranch_vccnz L_slow")
        e.label("L_slow_back")
        self.tail.append(self.slow_attention)
        vad = V.alloc(1)
        e(f"s_lshl_b32 {s(S_T1)}, {s(S_GB)}, 5\ns_lshl_b32 {s(S_T2)}, {s(S_J)}, 1\ns_add_u32 {s(S_T1)}, {s(S_T1)}, {s(S_T2)}\ns_lshl_b32 {s(S_T1)}, {s(S_T1)}, 10\ns_add_u32 {s(S_T1)}, {s(S_T1)}, {OOFF}")
        e(f"v_rcp_f32 {v(S[0])}, {v(l0)}\nv_rcp_f32 {v(S[0]+2)}, {v(l1)}\nv_add_u32 {v(vad)}, {s(S_T1)}, {v(self.vl16)}")
        for hd in range(2):
            e(f"v_mul_f32 {v(S[0]+2*hd)}, {v(self.vg)}, {v(S[0]+2*hd)}")
        for hd in range(2):
            src = O[hd] + 8*hd
            for i in range(4): e(f"v_pk_mul_f32 {v(src+2*i,2)}, {v(src+2*i,2)}, {v(S[0]+2*hd,2)} op_sel_hi:[1,0]")
            for i in range(4): e(f"v_cvt_pk_bf16_f32 {v(P[hd]+i)}, {v(src+2*i)}, {v(src+2*i+1)}")
            e(f"buffer_store_dwordx4 {v(P[hd],4)}, {v(vad)}, {s(SWS,4)}, 0 offen offset:{hd*1024} sc1", tag="ost")
        self.att_release = [(md,16),(mo,16),(cz,16),(S[0],16),(S[1],16),(O[0],16),(O[1],16),(vkv,1),(vad,1),(self.vq,8),(self.vg,2)] + \
            [(k,4) for k in Kf] + [(x,8) for y in Vf for x in y]
        self.att_release2 = [(P[0],8),(P[1],8)]

    def slow_attention(self):
        e = self.e
        A = self.att
        md, mo, cz, S, P, O, Kf, Vf, vkv = (A[k] for k in ("md","mo","cz","S","P","O","Kf","Vf","vkv"))
        t0, t1, t2 = self.t0, self.t1, self.t2
        R = e.raw
        R("L_slow:")
        R("    s_waitcnt lgkmcnt(0)\n    s_nop 15\n    s_nop 3")
        NEG = f2u(-1.0e30)
        for hd in range(2):
            q = v(self.vq+4*hd, 4)
            mask = S_MA if hd == 0 else S_MB
            for ps in range(2):
                def block(C):
                    R(f"    ds_read_b128 {v(Kf[0],4)}, {v(t2)} offset:{hd*1024}")
                    if ps == 1:
                        R(f"    s_mov_b64 exec, {s(mask,2)}\n    ds_read_b128 {v(Vf[hd][0],4)}, {v(t2)} offset:2048\n    ds_read_b128 {v(Vf[hd][0]+4,4)}, {v(t2)} offset:3072\n    s_mov_b64 exec, -1")
                    R(f"    s_waitcnt lgkmcnt(0)\n    {MF} {v(S[0],16)}, {v(Kf[0],4)}, {q}, {C}\n    s_nop 15")
                    if ps == 0:
                        for i in range(0, 16, 2): R(f"    v_max3_f32 {v(t0)}, {v(t0)}, {v(S[0]+i)}, {v(S[0]+i+1)}")
                    else:
                        for i in range(16): R(f"    v_sub_f32 {v(S[0]+i)}, {v(S[0]+i)}, {v(t0)}")
                        for i in range(16): R(f"    v_exp_f32 {v(S[0]+i)}, {v(S[0]+i)}")
                        R("    s_nop 0")
                        for i in range(8): R(f"    v_cvt_pk_bf16_f32 {v(P[0]+i)}, {v(S[0]+2*i)}, {v(S[0]+2*i+1)}")
                        R(f"    s_nop 1\n    {MF} {v(O[hd],16)}, {v(Vf[hd][0],4)}, {v(P[0],4)}, {v(O[hd],16)}")
                        R(f"    {MF} {v(O[hd],16)}, {v(Vf[hd][0]+4,4)}, {v(P[0]+4,4)}, {v(O[hd],16)}\n    s_nop 15")
                    R(f"    v_subrev_u32 {v(t2)}, 4096, {v(t2)}")
                n = f"L_sl_{hd}_{ps}"
                if ps == 0:
                    R(f"    v_mov_b32 {v(t0)}, {NEG:#x}")
                else:
                    for i in range(16): R(f"    v_mov_b32 {v(O[hd]+i)}, 0")
                R(f"    v_add_u32 {v(t2)}, {8*4096}, {v(vkv)}\n    s_min_u32 {s(S_CNT)}, {s(S_GB)}, 7")
                block(v(md, 16))
                R(f"{n}_loop:\n    s_cmp_eq_u32 {s(S_CNT)}, 0\n    s_cbranch_scc1 {n}_old")
                block("0")
                R(f"    s_sub_u32 {s(S_CNT)}, {s(S_CNT)}, 1\n    s_branch {n}_loop\n{n}_old:")
                R(f"    s_cmp_lt_u32 {s(S_GB)}, 8\n    s_cbranch_scc1 {n}_done")
                block(v(mo, 16))
                R(f"{n}_done:")
                if ps == 0:
                    R(f"    v_mov_b32 {v(t1)}, {v(t0)}\n    s_nop 1\n    v_permlane32_swap_b32 {v(t0)}, {v(t1)}\n    s_nop 1\n    v_max_f32 {v(t0)}, {v(t0)}, {v(t1)}")
        R("    s_nop 15\n    s_branch L_slow_back")

    def final(self):
        e, V, o = self.e, self.V, self.o
        t0, t1, t2 = self.t0, self.t1, self.t2
        for r, n in self.att_release: V.release(r, n)
        acc = V.alloc(64, 4)
        NB = 12
        ring = V.alloc(8*NB, 4)
        vh = V.alloc(4, 1)
        vo = V.alloc(2, 1)
        vfl = self.vfl
        e(f"s_lshl_b32 {s(S_T1)}, {s(S_RB)}, 1\ns_mul_i32 {s(S_T1)}, {s(S_T1)}, 86\ns_mul_i32 {s(S_T2)}, {s(S_W)}, 22\ns_add_u32 {s(S_T1)}, {s(S_T1)}, {s(S_T2)}\ns_lshl_b32 {s(S_T1)}, {s(S_T1)}, 10\ns_add_u32 {s(S_T1)}, {s(S_T1)}, {HOFF}")
        e(f"v_add_u32 {v(vh)}, {s(S_T1)}, {v(self.vl16)}\nv_add_u32 {v(vh+1)}, {86*1024}, {v(vh)}")
        e(f"s_cmp_eq_u32 {s(S_W)}, 3\ns_cselect_b32 {s(S_T2)}, {OOB}, 0\nv_or_b32 {v(vh+2)}, {s(S_T2)}, {v(vh)}\nv_or_b32 {v(vh+3)}, {s(S_T2)}, {v(vh+1)}")
        e(f"s_lshl_b32 {s(S_T1)}, {s(S_RB)}, 6\ns_lshl_b32 {s(S_T2)}, {s(S_W)}, 3\ns_add_u32 {s(S_T1)}, {s(S_T1)}, {s(S_T2)}\ns_lshl_b32 {s(S_T1)}, {s(S_T1)}, 10\ns_add_u32 {s(S_T1)}, {s(S_T1)}, {OOFF}")
        e(f"v_add_u32 {v(vo)}, {s(S_T1)}, {v(self.vl16)}\nv_add_u32 {v(vo+1)}, {32*1024}, {v(vo)}")
        self.poll("h", vfl, SWS, vfl+1, "8")
        self.stamp()
        for r, n in self.att_release2: V.release(r, n)
        def bload(i):
            L = []
            r = ring + 8*(i % NB)
            if i < 22: base, k = (vh if i < 20 else vh + 2), i
            else: base, k = vo, i - 22
            pre = f"s_mov_b32 {s(S_T2)}, {(k//4)*4096}\n" if k % 4 == 0 else ""
            for t in range(2):
                L.append((pre if t == 0 else "") + f"buffer_load_dwordx4 {v(r+4*t,4)}, {v(base+t)}, {s(SWS,4)}, {s(S_T2)} offen offset:{(k%4)*1024} sc1")
            return L
        def wreg(i):
            g, u = i // 2, i % 2
            gg = g if g < 9 else g - 9
            return 16*gg + 8*u
        nissued = 0
        def issue_to(n):
            nonlocal nissued
            while nissued < n:
                if nissued == 22:
                    self.stamp()
                    e(f"v_add_u32 {v(vfl)}, {8*128}, {v(vfl)}")
                    e(f"buffer_load_dword {v(vfl+1)}, {v(vfl)}, {s(SWS,4)}, 0 offen sc1")
                    self.poll("o", vfl, SWS, vfl+1, "8")
                    self.stamp()
                for x in bload(nissued): e(x)
                nissued += 1
        issue_to(4)
        e.wait_tag("ost")
        e(f"s_add_u32 s3, s3, {8*128}\nv_mov_b32 {v(t0)}, s3\ns_mov_b64 exec, 1")
        e(f"buffer_atomic_add {v(self.vone)}, {v(t0)}, {s(SWS,4)}, 0 offen sc1\ns_mov_b64 exec, -1")
        issue_to(NB - 1)
        for i in range(30):
            g = i // 2
            r = ring + 8*(i % NB)
            w = wreg(i)
            for rt in range(2):
                for ct in range(2):
                    d = acc + 32*rt + 16*ct
                    cin = "0" if i == 0 else v(d, 16)
                    e(f"{MF} {v(d,16)}, {a(w+4*ct,4)}, {v(r+4*rt,4)}, {cin}")
            if i % 2 == 1 and g + 9 < 15:
                e.wait_tag(f"w{g+9}")
                for x in self.wf_reads(g + 9, 16*g): e(x)
            lim = i + NB
            if i < 21: lim = min(lim, 22)
            issue_to(min(30, lim))
        self.stamp()
        e.wait_all(vm=False, lg=True)
        e("s_barrier")
        e(f"v_and_b32 {v(t0)}, 31, v0\nv_mul_u32_u24 {v(t0)}, {REDROW}, {v(t0)}\nv_lshrrev_b32 {v(t1)}, 5, v0\nv_lshl_add_u32 {v(t0)}, {v(t1)}, 4, {v(t0)}")
        e(f"s_mul_i32 {s(S_T1)}, {s(S_W)}, {64*REDROW}\nv_add_u32 {v(t0)}, {s(S_T1)}, {v(t0)}")
        for rt in range(2):
            for ct in range(2):
                for q in range(4):
                    d = acc + 32*rt + 16*ct + 4*q
                    e(f"ds_write_b128 {v(t0)}, {v(d,4)} offset:{rt*32*REDROW + (32*ct+8*q)*4}")
        e(f"v_lshrrev_b32 {v(t1)}, 3, v0\ns_lshl_b32 {s(S_T1)}, {s(S_W)}, 4\nv_add_u32 {v(t1)}, {s(S_T1)}, {v(t1)}")
        e(f"v_and_b32 {v(t2)}, 7, v0\nv_mul_u32_u24 {v(t0)}, {REDROW}, {v(t1)}\nv_lshl_add_u32 {v(t0)}, {v(t2)}, 5, {v(t0)}")
        e(f"s_lshl_b32 {s(S_T1)}, {s(S_RB)}, 16\ns_lshl_b32 {s(S_T2)}, {s(S_CB)}, 7\ns_add_u32 {s(S_T1)}, {s(S_T1)}, {s(S_T2)}\nv_lshlrev_b32 {v(t1)}, 10, {v(t1)}\nv_lshl_add_u32 {v(t1)}, {v(t2)}, 4, {v(t1)}\nv_add_u32 {v(t1)}, {s(S_T1)}, {v(t1)}")
        e.wait_all(vm=False, lg=True)
        e("s_barrier")
        for i in range(2):
            for w in range(4):
                for k in range(2):
                    e(f"ds_read_b128 {v(ring+32*i+8*w+4*k,4)}, {v(t0)} offset:{w*64*REDROW + i*8*REDROW + 16*k}")
        for i in range(2):
            b = ring + 32*i
            for k in range(4):
                e(f"v_pk_add_f32 {v(b+2*k,2)}, {v(b+2*k,2)}, {v(b+8+2*k,2)}\nv_pk_add_f32 {v(b+16+2*k,2)}, {v(b+16+2*k,2)}, {v(b+24+2*k,2)}")
            for k in range(4): e(f"v_pk_add_f32 {v(b+2*k,2)}, {v(b+2*k,2)}, {v(b+16+2*k,2)}")
            for k in range(4): e(f"v_cvt_pk_bf16_f32 {v(b+8+k)}, {v(b+2*k)}, {v(b+2*k+1)}")
            so = "0" if i == 0 else s(S_T2)
            if i == 1: e(f"s_mov_b32 {s(S_T2)}, 8192")
            e(f"buffer_store_dwordx4 {v(b+8,4)}, {v(t1)}, {s(SOUT,4)}, {so} offen")
        self.stamp()
        if o["stamps"]:
            e.force_wait("s_waitcnt vmcnt(0)")
            self.stamp()
            e(f"s_memrealtime s[4:5]")
            e.force_wait("s_waitcnt lgkmcnt(0)")
            e(f"v_mov_b32 {v(t0)}, s4\nv_accvgpr_write_b32 {a(224+15)}, {v(t0)}")
            e(f"s_lshl_b32 {s(S_T1)}, s2, 2\ns_add_u32 {s(S_T1)}, {s(S_T1)}, {s(S_W)}\ns_lshl_b32 {s(S_T1)}, {s(S_T1)}, 6\ns_add_u32 {s(S_T1)}, {s(S_T1)}, {STAMPOFF}\nv_mov_b32 {v(t0)}, {s(S_T1)}")
            for k in range(4): e(f"buffer_store_dwordx4 {a(224+4*k,4)}, {v(t0)}, {s(SWS,4)}, 0 offen offset:{16*k}")

    def build(self):
        e = self.e
        self.prologue()
        self.stage1()
        self.f_epilogue()
        self.attention()
        self.final()
        e.label("L_end")
        e("s_endpgm")
        e.label("L_hot_end")
        for f in self.tail: f()
        hdr = open("gated_mix__sliding_block__glu_gated_glu__prompt.s.ref").read().split("; Override")[0] if self.o.get("hdr", True) else ""
        t = hdr + f"; @launch grid=(256,1,1) block=(256,1,1) lds={LDS_BYTES}\n"
        t += '.amdgcn_target "amdgcn-amd-amdhsa--gfx950"\n.text\n'
        t += f".globl {KNAME}\n.p2align 8\n.type {KNAME},@function\n{KNAME}:\n" + e.text()
        t += f'''.section .rodata,"a"
.p2align 6
.amdhsa_kernel {KNAME}
  .amdhsa_next_free_vgpr 512
  .amdhsa_next_free_sgpr 102
  .amdhsa_accum_offset 256
  .amdhsa_group_segment_fixed_size 0
  .amdhsa_kernarg_size 88
  .amdhsa_user_sgpr_count 2
  .amdhsa_user_sgpr_kernarg_segment_ptr 1
  .amdhsa_system_sgpr_workgroup_id_x 1
  .amdhsa_float_denorm_mode_32 3
.end_amdhsa_kernel
'''
        return t


if __name__ == "__main__":
    out = sys.argv[1]
    kw = {}
    for x in sys.argv[2:]:
        k, val = x.split("=")
        kw[k] = int(val) if val.lstrip("-").isdigit() else val
    g = Gen(**kw)
    t = g.build()
    open(out, "w").write(t)
    print("vgpr hi", g.V.hi, "nops", g.e.nops, "lines", t.count("\n"), "stamps", g.nst)
```

```python
import sys, math, struct
from emit import Emit, Regs

KNAME = "gated_mix__sliding_block__glu_gated_glu__prompt_kernel"

KVOFF = 0
HOFF = 4 << 20
OOFF = 10 << 20
FLAGOFF = 12 << 20
STAMPOFF = 13 << 20
WS_USED = 14 << 20
OOB = 0x80000000

SLOT = 28672
NSLOT = 5
KVB = 110592
GWB = 159744
ZB = GWB + 2048
LDS_BYTES = 163840
WRING = 27648
REDROW = 272
BIAS = 4096

def f2u(x):
    return struct.unpack("<I", struct.pack("<f", x))[0]

def v(i, n=1): return f"v{i}" if n == 1 else f"v[{i}:{i+n-1}]"
def a(i, n=1): return f"a{i}" if n == 1 else f"a[{i}:{i+n-1}]"
def s(i, n=1): return f"s{i}" if n == 1 else f"s[{i}:{i+n-1}]"
def phys(c): return ((c + 2) % NSLOT) * SLOT

MF = "v_mfma_f32_32x32x16_bf16"

SX, SWQ, SWG, SWU, SWD, SWO, SWS, SOUT, SDBG, SGW = 8, 12, 16, 20, 24, 28, 32, 36, 40, 44
SP = 48
S_W, S_R, S_J, S_ROT, S_RB, S_CB = 70, 71, 72, 73, 74, 75
S_T0, S_T1, S_T2, S_T3 = 76, 77, 78, 79
S_XO, S_WO = 80, 81
S_MX, S_MW = 82, 83
S_GB = 84
S_MA, S_MB = 86, 88
S_C0 = 90
S_RING = 92
S_CNT = 93
S_WV = 94
S_ST = 96


class Gen:
    def __init__(self, stamps=False, force_slow=False, look=2, fmap="4x8", rot=True, touch=True, codepf=True, probe=None):
        self.o = dict(stamps=stamps, force_slow=force_slow, look=look, fmap=fmap, rot=rot, touch=touch, codepf=codepf, probe=probe)
        self.e = Emit()
        self.V = Regs(256, 1)
        self.tail = []
        self.nst = 0

    def stamp(self):
        if self.o["probe"] is not None:
            if self.o["probe"] == self.nst:
                self.e.force_wait("s_waitcnt lgkmcnt(0)")
                self.e("s_memrealtime s[6:7]")
                self.e.force_wait("s_waitcnt lgkmcnt(0)")
            self.nst += 1
            return
        if not self.o["stamps"]: return
        e = self.e
        e.force_wait("s_waitcnt lgkmcnt(0)")
        e(f"s_memtime {s(S_ST,2)}")
        e.force_wait("s_waitcnt lgkmcnt(0)")
        e(f"s_sub_u32 {s(S_ST)}, {s(S_ST)}, {s(S_ST+2)}")
        e(f"v_mov_b32 {v(self.vst)}, {s(S_ST)}")
        e(f"v_accvgpr_write_b32 {a(224+self.nst)}, {v(self.vst)}")
        self.nst += 1

    def srd(self, d, p, size):
        e = self.e
        e(f"s_mov_b64 {s(d,2)}, {s(p,2)}")

    def poll(self, name, vaddr, srd, vdst, target_s):
        e = self.e
        lr, lo = f"L_{name}_retry", f"L_{name}_ok"
        e(f"v_cmp_ne_u32 vcc, {target_s}, {v(vdst)}")
        e(f"s_cbranch_vccnz {lr}")
        e.label(lo)
        def out():
            e.label(lr)
            e.fence_hazards()
            e(f"s_mov_b32 {s(S_CNT)}, 0")
            e.label(lr + "_l")
            e.raw(f"    s_sleep 2")
            e.raw(f"    buffer_load_dword {v(vdst)}, {v(vaddr)}, {s(srd,4)}, 0 offen sc1")
            e.raw(f"    s_add_u32 {s(S_CNT)}, {s(S_CNT)}, 1")
            e.raw(f"    s_waitcnt vmcnt(0)")
            e.raw(f"    v_cmp_ne_u32 vcc, {target_s}, {v(vdst)}")
            e.raw(f"    s_cbranch_vccz {lo}")
            e.raw(f"    s_cmp_lt_u32 {s(S_CNT)}, 0x40000")
            e.raw(f"    s_cbranch_scc1 {lr}_l")
            e.raw(f"    s_branch {lo}")
        self.tail.append(out)

    def prologue(self):
        e, V, o = self.e, self.V, self.o
        e(f"s_cmp_ge_u32 s2, 256\ns_cbranch_scc1 L_end")
        e(f"s_load_dwordx16 {s(SP,16)}, s[0:1], 0")
        e(f"s_load_dwordx4 {s(SP+16,4)}, s[0:1], 64")
        e(f"s_load_dwordx2 {s(SP+20,2)}, s[0:1], 80")
        if o["probe"] is not None:
            e("s_memrealtime s[100:101]")
        if o["stamps"]:
            self.vst = V.alloc(1)
            e(f"s_memtime {s(S_ST+2,2)}")
        t0, t1, t2 = V.alloc(1), V.alloc(1), V.alloc(1)
        e(f"v_lshrrev_b32 {v(t0)}, 6, v0\nv_and_b32 v0, 63, v0")
        e(f"v_readfirstlane_b32 {s(S_W)}, {v(t0)}")
        e(f"s_lshr_b32 {s(S_T0)}, s2, 3")
        e(f"s_lshl_b32 {s(S_WV)}, {s(S_T0)}, 2\ns_add_u32 {s(S_WV)}, {s(S_WV)}, {s(S_W)}")
        if o["codepf"]:
            self.vpf = V.alloc(1)
            e(f"s_getpc_b64 s[4:5]")
            e.label("L_pc")
            e(f"v_and_b32 {v(t0)}, 3, v0\ns_lshl_b32 {s(S_T1)}, {s(S_WV)}, 9\nv_lshl_add_u32 {v(t0)}, {v(t0)}, 7, {s(S_T1)}")
            e(f"s_mov_b32 {s(S_T1)}, L_hot_end - L_pc - 4\nv_min_u32 {v(t0)}, {s(S_T1)}, {v(t0)}\nv_and_b32 {v(t0)}, -4, {v(t0)}")
            e(f"global_load_dword {v(self.vpf)}, {v(t0)}, s[4:5]")
        e(f"s_and_b32 {s(S_T1)}, s2, 1\ns_lshl_b32 {s(S_R)}, {s(S_T1)}, 3\ns_and_b32 {s(S_T1)}, {s(S_T0)}, 7\ns_add_u32 {s(S_R)}, {s(S_R)}, {s(S_T1)}")
        e(f"s_bfe_u32 {s(S_J)}, s2, 0x20001\ns_lshl_b32 {s(S_J)}, {s(S_J)}, 2\ns_lshr_b32 {s(S_T1)}, {s(S_T0)}, 3\ns_add_u32 {s(S_J)}, {s(S_J)}, {s(S_T1)}")
        if o["rot"]:
            e(f"s_lshl_b32 {s(S_ROT)}, {s(S_J)}, 1\ns_add_u32 {s(S_ROT)}, {s(S_ROT)}, {s(S_R)}\ns_and_b32 {s(S_ROT)}, {s(S_ROT)}, 7")
        else:
            e(f"s_mov_b32 {s(S_ROT)}, 0")
        e(f"s_lshl_b32 {s(S_GB)}, {s(S_R)}, 2\ns_add_u32 {s(S_GB)}, {s(S_GB)}, {s(S_W)}")
        self.vxa = vxa = V.alloc(4, 1)
        e(f"v_lshrrev_b32 {v(t0)}, 3, v0\ns_lshl_b32 {s(S_T1)}, {s(S_GB)}, 15\nv_lshl_add_u32 {v(t0)}, {v(t0)}, 10, {s(S_T1)}")
        e(f"v_and_b32 {v(t1)}, 7, v0\nv_lshrrev_b32 {v(t2)}, 4, v0\nv_xor_b32 {v(t1)}, {v(t1)}, {v(t2)}")
        e(f"v_lshl_add_u32 {v(vxa)}, {v(t1)}, 4, {v(t0)}")
        e(f"v_xor_b32 {v(vxa+1)}, 64, {v(vxa)}\nv_add_u32 {v(vxa+1)}, 7168, {v(vxa+1)}")
        e(f"v_add_u32 {v(vxa+2)}, {2*7168}, {v(vxa)}\nv_add_u32 {v(vxa+3)}, {2*7168}, {v(vxa+1)}")
        self.vqa = vqa = V.alloc(1)
        self.vrow = vrow = V.alloc(1)
        e(f"v_lshrrev_b32 {v(vrow)}, 2, v0\ns_lshl_b32 {s(S_T1)}, {s(S_W)}, 4\nv_add_u32 {v(vrow)}, {s(S_T1)}, {v(vrow)}")
        e(f"v_and_b32 {v(t1)}, 3, v0\nv_lshlrev_b32 {v(t1)}, 4, {v(t1)}\nv_mul_u32_u24 {v(t0)}, 3072, {v(vrow)}")
        e(f"s_lshl_b32 {s(S_T1)}, {s(S_J)}, 6\nv_add3_u32 {v(vqa)}, {v(t0)}, {v(t1)}, {s(S_T1)}")
        e(f"s_lshl_b32 {s(S_MX)}, {s(S_W)}, 12\ns_mul_i32 {s(S_MW)}, {s(S_W)}, 3072")
        for d, size in ((SX, 2048*1024), (SWQ, 512*3072), (SWS, WS_USED), (SGW, 1024)):
            e(f"s_mov_b32 {s(d+2)}, {size}\ns_mov_b32 {s(d+3)}, 0x20000")
        self.vl16 = vl16 = V.alloc(1)
        e(f"v_lshlrev_b32 {v(vl16)}, 4, v0")
        e.force_wait("s_waitcnt lgkmcnt(0)")
        e(f"s_mov_b64 {s(SX,2)}, {s(SP,2)}\ns_mov_b64 {s(SWQ,2)}, {s(SP+2,2)}")
        self.stamp()
        for ins in self.dma_chunk(0): e(ins, tag="c0")
        e(f"s_mov_b64 {s(SWS,2)}, {s(SP+20,2)}\ns_mov_b64 {s(SGW,2)}, {s(SP+14,2)}")
        e(f"s_lshl_b32 {s(S_T1)}, {s(S_W)}, 10\ns_add_u32 m0, {s(S_T1)}, {GWB}")
        e(f"s_cmp_lt_u32 {s(S_W)}, 2\ns_cselect_b32 {s(S_T1)}, 0, {OOB}\nv_or_b32 {v(t0)}, {s(S_T1)}, {v(vl16)}")
        e(f"s_cmp_eq_u32 {s(S_W)}, 3\ns_cselect_b32 {s(S_T1)}, {ZB}, m0\ns_mov_b32 m0, {s(S_T1)}")
        e(f"buffer_load_dwordx4 {v(t0)}, {s(SGW,4)}, 0 offen lds", tag="c0")
        self.vz4 = vz4 = V.alloc(4, 2)
        for i in range(4): e(f"v_mov_b32 {v(vz4+i)}, 0")
        e(f"s_or_b32 {s(S_T1)}, {s(S_J)}, {s(S_W)}\ns_cmp_eq_u32 {s(S_T1)}, 0\ns_cselect_b32 {s(S_T2)}, 0, {OOB}")
        e(f"s_lshl_b32 {s(S_T1)}, {s(S_R)}, 12\ns_add_u32 {s(S_T1)}, {s(S_T1)}, {FLAGOFF}\ns_or_b32 {s(S_T1)}, {s(S_T1)}, {s(S_T2)}")
        e(f"v_and_b32 {v(t0)}, 31, v0\nv_lshl_add_u32 {v(t0)}, {v(t0)}, 7, {s(S_T1)}")
        e(f"buffer_store_dwordx4 {v(vz4,4)}, {v(t0)}, {s(SWS,4)}, 0 offen sc1", tag="c0")
        self.vdb = vdb = V.alloc(1)
        e(f"s_lshl_b32 {s(S_T1)}, {s(S_R)}, 2\ns_or_b32 {s(S_T1)}, {s(S_T1)}, {s(S_T2)}\nv_mov_b32 {v(vdb)}, {s(S_T1)}")
        for c in range(1, o["look"]):
            for ins in self.dma_chunk(c): e(ins, tag=f"c{c}")
        e(f"s_sub_u32 {s(SWG)}, {s(SP+8)}, {BIAS}\ns_subb_u32 {s(SWG+1)}, {s(SP+9)}, 0")
        e(f"s_sub_u32 {s(SWU)}, {s(SP+10)}, {BIAS}\ns_subb_u32 {s(SWU+1)}, {s(SP+11)}, 0")
        e(f"s_mov_b64 {s(SWD,2)}, {s(SP+12,2)}\ns_mov_b64 {s(SWO,2)}, {s(SP+4,2)}\ns_mov_b64 {s(SOUT,2)}, {s(SP+16,2)}\ns_mov_b64 {s(SDBG,2)}, {s(SP+18,2)}")
        for d, size in ((SWG, 512*2752+BIAS), (SWU, 512*2752+BIAS), (SWD, 1376*1024), (SWO, 512*1024), (SOUT, 2048*1024), (SDBG, 256)):
            e(f"s_mov_b32 {s(d+2)}, {size}\ns_mov_b32 {s(d+3)}, 0x20000")
        self.vfa = vfa = V.alloc(3, 1)
        self.S_PO = S_PO = 85
        e(f"s_lshr_b32 {s(S_T1)}, {s(S_J)}, 2\ns_mul_i32 {s(S_T1)}, {s(S_T1)}, 11\ns_and_b32 {s(S_T2)}, {s(S_J)}, 3\ns_mul_i32 {s(S_T3)}, {s(S_T2)}, 3\ns_add_u32 {s(S_T1)}, {s(S_T1)}, {s(S_T3)}")
        e(f"s_cmp_eq_u32 {s(S_J)}, 15\ns_subb_u32 {s(S_PO)}, {s(S_T1)}, 0")
        e(f"s_cmp_eq_u32 {s(S_T2)}, 3\ns_cselect_b32 {s(S_T3)}, {OOB}, 0\ns_cmp_eq_u32 {s(S_J)}, 14\ns_cselect_b32 {s(95)}, {OOB}, {s(S_T3)}")
        self.S_NP2 = 95
        e(f"v_mul_u32_u24 {v(t0)}, 2752, {v(vrow)}\ns_lshl_b32 {s(S_T1)}, {s(S_PO)}, 6\ns_add_u32 {s(S_T1)}, {s(S_T1)}, {BIAS}\nv_add3_u32 {v(vfa)}, {v(t0)}, {v(t1)}, {s(S_T1)}")
        e(f"v_subrev_u32 {v(vfa+1)}, {1024-64}, {v(vfa)}\nv_subrev_u32 {v(vfa+2)}, {2*(1024-64)}, {v(vfa)}\nv_or_b32 {v(vfa+2)}, {s(self.S_NP2)}, {v(vfa+2)}")
        V.release(vrow, 1)
        self.vwr = vwr = V.alloc(3, 1)
        e(f"v_lshrrev_b32 {v(t0)}, 5, v0\nv_lshlrev_b32 {v(t0)}, 9, {v(t0)}\nv_bfe_u32 {v(t1)}, v0, 2, 2\nv_lshl_add_u32 {v(t0)}, {v(t1)}, 6, {v(t0)}")
        e(f"v_bfe_u32 {v(t1)}, v0, 4, 1\nv_lshl_add_u32 {v(t0)}, {v(t1)}, 5, {v(t0)}")
        e(f"v_and_b32 {v(t1)}, 1, v0\nv_lshl_add_u32 {v(t0)}, {v(t1)}, 4, {v(t0)}\nv_bfe_u32 {v(t1)}, v0, 1, 1\nv_lshl_add_u32 {v(vwr)}, {v(t1)}, 3, {v(t0)}")
        e(f"v_add_u32 {v(vwr+1)}, {2*SLOT}, {v(vwr)}\nv_add_u32 {v(vwr+2)}, {4*SLOT}, {v(vwr)}")
        self.vxr = vxr = V.alloc(12, 1)
        e(f"v_and_b32 {v(t0)}, 31, v0\nv_lshl_add_u32 {v(t0)}, {v(t0)}, 7, {s(S_MX)}\nv_bfe_u32 {v(t1)}, v0, 1, 3\nv_lshrrev_b32 {v(t2)}, 5, v0\nv_xor_b32 {v(t1)}, {v(t1)}, {v(t2)}")
        e(f"v_lshl_add_u32 {v(vxr)}, {v(t1)}, 4, {v(t0)}")
        for st in range(1, 4): e(f"v_xor_b32 {v(vxr+st)}, {32*st}, {v(vxr)}")
        for win in (1, 2):
            for st in range(4): e(f"v_add_u32 {v(vxr+4*win+st)}, {2*SLOT*win}, {v(vxr+st)}")
        self.vgr = vgr = V.alloc(1)
        e(f"s_lshl_b32 {s(S_T1)}, {s(S_ROT)}, 7\ns_add_u32 {s(S_T1)}, {s(S_T1)}, {GWB}\nv_lshl_add_u32 {v(t0)}, {v(t2)}, 4, {s(S_T1)}")
        e(f"v_and_b32 {v(t1)}, 27, v0\nv_cmp_eq_u32 vcc, 0, {v(t1)}\nv_mov_b32 {v(vgr)}, {ZB}\nv_cndmask_b32 {v(vgr)}, {v(vgr)}, {v(t0)}, vcc")
        if o["fmap"] == "4x8":
            e(f"s_and_b32 {s(S_RB)}, s2, 7\ns_lshl_b32 {s(S_RB)}, {s(S_RB)}, 2\ns_and_b32 {s(S_T1)}, {s(S_T0)}, 3\ns_add_u32 {s(S_RB)}, {s(S_RB)}, {s(S_T1)}\ns_lshr_b32 {s(S_CB)}, {s(S_T0)}, 2")
        else:
            e(f"s_lshl_b32 {s(S_RB)}, {s(S_R)}, 1\ns_lshr_b32 {s(S_T1)}, {s(S_J)}, 3\ns_add_u32 {s(S_RB)}, {s(S_RB)}, {s(S_T1)}\ns_and_b32 {s(S_CB)}, {s(S_J)}, 7")
        e(f"s_mov_b32 {s(S_MA)}, 0xffff\ns_mov_b32 {s(S_MA+1)}, 0xffff\ns_mov_b32 {s(S_MB)}, 0xffff0000\ns_mov_b32 {s(S_MB+1)}, 0xffff0000")
        self.t0, self.t1, self.t2 = t0, t1, t2

    def dma_chunk(self, c):
        L = []
        pre = f"s_add_u32 {s(S_T3)}, {s(S_ROT)}, {c % 8}\ns_and_b32 {s(S_T3)}, {s(S_T3)}, 7\n"
        if c < 8:
            L.append(pre + f"s_lshl_b32 {s(S_XO)}, {s(S_T3)}, 7\ns_add_u32 m0, {s(S_MX)}, {phys(c)}\ns_mul_i32 {s(S_WO)}, {s(S_T3)}, {64*3072}\n"
                     f"buffer_load_dwordx4 {v(self.vxa)}, {s(SX,4)}, {s(S_XO)} offen lds")
            for t in range(1, 4):
                L.append(f"buffer_load_dwordx4 {v(self.vxa+t)}, {s(SX,4)}, {s(S_XO)} offen offset:{t*1024} lds")
            for b in range(3):
                p = f"s_add_u32 m0, {s(S_MW)}, {phys(c)+16384}\n" if b == 0 else ""
                L.append(p + f"buffer_load_dwordx4 {v(self.vqa)}, {s(SWQ,4)}, {s(S_WO)} offen offset:{b*1024} lds")
        else:
            for m, srd in enumerate((SWG, SWU)):
                for p in range(3):
                    q = ""
                    if p == 0:
                        if m == 0: q = pre + f"s_lshl_b32 {s(S_XO)}, {s(S_MW)}, 1\ns_add_u32 m0, {s(S_XO)}, {phys(c)}\ns_mul_i32 {s(S_WO)}, {s(S_T3)}, {64*2752}\n"
                        else: q = f"s_add_u32 m0, {s(S_XO)}, {phys(c)+3072}\n"
                    L.append(q + f"buffer_load_dwordx4 {v(self.vfa+p)}, {s(srd,4)}, {s(S_WO)} offen offset:{p*1024} lds")
        return L

    def stage1(self):
        e, V, o = self.e, self.V, self.o
        look = o["look"]
        accq = V.alloc(64, 4)
        accf = V.alloc(96, 4)
        NR = 5
        ring = V.alloc(4*NR, 4)
        self.accq, self.accf = accq, accf
        items = []
        for c in range(16):
            for st in range(4):
                for t in range(4 if c < 8 else 6):
                    items.append((c, st, t))
        LEAD = 3
        def reads(idx):
            c, st, t = items[idx]
            r = ring + 4*(idx % NR)
            ps = (c + 2) % NSLOT
            win, base = ps // 2, (ps % 2) * SLOT
            L = []
            if c < 8 and t == 0:
                L.append(f"ds_read_b128 {a(16*c+4*st,4)}, {v(self.vxr+4*win+st)} offset:{base}")
            if c < 8 and t == 3:
                L.append(f"ds_read_b128 {v(r,4)}, {v(self.vgr)} offset:{c*128+st*32}")
            else:
                off = base + (16384 + st*3072 if c < 8 else st*6144) + t*1024
                L.append(f"ds_read_b64_tr_b16 {v(r,2)}, {v(self.vwr+win)} offset:{off}")
                L.append(f"ds_read_b64_tr_b16 {v(r+2,2)}, {v(self.vwr+win)} offset:{off+256}")
            return L
        def mfma(idx):
            c, st, t = items[idx]
            r = ring + 4*(idx % NR)
            x = a(16*(c % 8)+4*st, 4)
            d = (accq if c < 8 else accf) + 16*t
            cin = "0" if (c % 8 == 0 and st == 0) else v(d, 16)
            if c < 8 and t == 2: return f"{MF} {v(d,16)}, {x}, {v(r,4)}, {cin}"
            return f"{MF} {v(d,16)}, {v(r,4)}, {x}, {cin}"
        def barrier(c):
            e.wait_tag(f"c{c}")
            e("s_barrier")
        fill = []
        dq = []
        def drain(q):
            if q:
                f = q.pop(0)
                if callable(f): f()
                else: e(f[0], tag=f[1])
        self.fill = fill
        barrier(0)
        self.stamp()
        vone = V.alloc(1); self.vone = vone
        e(f"v_mov_b32 {v(vone)}, 1")
        e(f"buffer_store_dword {v(vone)}, {v(self.vdb)}, {s(SDBG,4)}, 0 offen sc1")
        for ins in self.dma_chunk(look): dq.append((ins, f"c{look}"))
        for i in range(LEAD):
            for r_ in reads(i): e(r_)
        k = 0
        for idx, (c, st, t) in enumerate(items):
            nxt = idx + LEAD
            if nxt < len(items) and items[nxt][0] != items[nxt-1][0]:
                while dq: drain(dq)
                cn = items[nxt][0]
                barrier(cn)
                if cn + look < 16:
                    for ins in self.dma_chunk(cn + look): dq.append((ins, f"c{cn+look}"))
                self.chunk_hook(cn)
                k = 0
            e(mfma(idx))
            if nxt < len(items):
                for r_ in reads(nxt): e(r_)
            per = 2 if c < 8 else 3
            if dq and k % per == 0: drain(dq)
            else: drain(fill)
            k += 1
            if c == 8 and st == 0 and t == 5:
                self.stamp()
                self.q_epilogue_queue()
        while fill: drain(fill)
        V.release(ring, 4*NR)
        V.release(self.vxa, 4); V.release(self.vqa, 1); V.release(self.vfa, 3); V.release(self.vwr, 3); V.release(self.vxr, 12); V.release(self.vgr, 1)

    def chunk_hook(self, cn):
        e, V, fill = self.e, self.V, self.fill
        if cn == 5:
            self.vinit_a = V.alloc(1); self.vinit = V.alloc(1)
            fill.append((f"v_and_b32 {v(self.vinit_a)}, 15, v0\nv_lshlrev_b32 {v(self.vinit_a)}, 2, {v(self.vinit_a)}\n"
                         f"buffer_load_dword {v(self.vinit)}, {v(self.vinit_a)}, {s(SDBG,4)}, 0 offen sc1", None))
        if cn == 11:
            def pub():
                e.wait_tag("kvst")
                self.poll("init", self.vinit_a, SDBG, self.vinit, "1")
                t0 = self.t0
                e(f"s_lshl_b32 {s(S_T1)}, {s(S_R)}, 12\ns_lshr_b32 {s(S_T2)}, {s(S_J)}, 2\ns_lshl_b32 {s(S_T2)}, {s(S_T2)}, 7\ns_add_u32 {s(S_T1)}, {s(S_T1)}, {s(S_T2)}")
                e(f"s_and_b32 {s(S_T2)}, {s(S_J)}, 3\ns_lshl_b32 {s(S_T2)}, {s(S_T2)}, 2\ns_add_u32 {s(S_T1)}, {s(S_T1)}, {s(S_T2)}\ns_add_u32 {s(S_T1)}, {s(S_T1)}, {FLAGOFF+16*128}")
                e(f"v_mov_b32 {v(t0)}, {s(S_T1)}\ns_mov_b64 exec, 1")
                e(f"buffer_atomic_add {v(self.vone)}, {v(t0)}, {s(SWS,4)}, 0 offen sc1")
                e(f"s_mov_b64 exec, -1")
                e(f"s_lshr_b32 {s(S_T2)}, {s(S_W)}, 1\ns_sub_u32 {s(S_T2)}, 2, {s(S_T2)}\ns_lshl_b32 {s(S_T3)}, {s(S_T2)}, 12\ns_sub_u32 {s(S_T1)}, {s(S_T1)}, {s(S_T3)}")
                e(f"s_cmp_ge_u32 {s(S_R)}, {s(S_T2)}\ns_cselect_b32 {s(S_T1)}, {s(S_T1)}, {OOB}\ns_cselect_b32 {s(3)}, 4, 0\nv_mov_b32 {v(self.vinit_a)}, {s(S_T1)}")
            fill.append(pub)
        if cn == 12 and self.o["touch"]:
            fill.append(self.touch_final_w)
        if cn == 13:
            fill.append((f"buffer_load_dword {v(self.vinit)}, {v(self.vinit_a)}, {s(SWS,4)}, 0 offen sc1", None))
        if cn == 15:
            def halo():
                self.poll("kv", self.vinit_a, SWS, self.vinit, "s3")
                t0 = self.t0
                e(f"s_lshl_b32 {s(S_T1)}, {s(S_J)}, 6\ns_lshl_b32 {s(S_T2)}, {s(S_R)}, 2\ns_add_u32 {s(S_T1)}, {s(S_T1)}, {s(S_T2)}\ns_lshl_b32 {s(S_T2)}, {s(S_W)}, 1\ns_add_u32 {s(S_T1)}, {s(S_T1)}, {s(S_T2)}")
                e(f"s_sub_u32 {s(S_T1)}, {s(S_T1)}, 8\ns_lshl_b32 {s(S_T1)}, {s(S_T1)}, 12\ns_add_u32 {s(S_T1)}, {s(S_T1)}, {KVOFF}\ns_cmp_eq_u32 s3, 0\ns_cselect_b32 {s(S_T1)}, {OOB}, {s(S_T1)}")
                e(f"v_add_u32 {v(t0)}, {s(S_T1)}, {v(self.vl16)}\ns_lshl_b32 {s(S_T2)}, {s(S_W)}, 13\ns_add_u32 m0, {s(S_T2)}, {KVB}\ns_mov_b32 {s(S_T1)}, 4096")
            fill.append(halo)
            for u in range(2):
                for t in range(4):
                    p = f"s_add_u32 m0, m0, 4096\n" if (u == 1 and t == 0) else ""
                    so = "0" if u == 0 else s(S_T1)
                    fill.append((p + f"buffer_load_dwordx4 {v(self.t0)}, {s(SWS,4)}, {so} offen offset:{t*1024} sc1 lds", "halo"))

    def touch_final_w(self):
        e, V = self.e, self.V
        t1, t2 = self.t1, self.t2
        self.vtouch = V.alloc(3, 1)
        if self.o["fmap"] == "4x8":
            e(f"s_mul_i32 {s(S_T1)}, {s(S_WV)}, {86*128}\nv_lshl_add_u32 {v(t1)}, v0, 7, {s(S_T1)}")
            e(f"buffer_load_dword {v(self.vtouch)}, {v(t1)}, {s(SWD,4)}, 0 offen")
            e(f"v_min_u32 {v(t2)}, 21, v0\ns_add_u32 {s(S_T1)}, {s(S_T1)}, {64*128}\nv_lshl_add_u32 {v(t2)}, {v(t2)}, 7, {s(S_T1)}")
            e(f"buffer_load_dword {v(self.vtouch+1)}, {v(t2)}, {s(SWD,4)}, 0 offen")
            e(f"v_and_b32 {v(t1)}, 31, v0\ns_lshl_b32 {s(S_T1)}, {s(S_WV)}, 12\nv_lshl_add_u32 {v(t1)}, {v(t1)}, 7, {s(S_T1)}")
            e(f"buffer_load_dword {v(self.vtouch+2)}, {v(t1)}, {s(SWO,4)}, 0 offen")
        else:
            e(f"s_lshr_b32 {s(S_T2)}, {s(S_CB)}, 2\ns_lshl_b32 {s(S_T2)}, {s(S_T2)}, 9")
            e(f"v_min_u32 {v(t2)}, 43, v0\nv_lshrrev_b32 {v(t1)}, 2, {v(t2)}\nv_and_b32 {v(t2)}, 3, {v(t2)}\nv_lshlrev_b32 {v(t2)}, 7, {v(t2)}\nv_lshl_add_u32 {v(t1)}, {v(t1)}, 10, {v(t2)}")
            e(f"s_mul_i32 {s(S_T1)}, {s(S_WV)}, {11*1024}\ns_add_u32 {s(S_T1)}, {s(S_T1)}, {s(S_T2)}")
            e(f"buffer_load_dword {v(self.vtouch)}, {v(t1)}, {s(SWD,4)}, {s(S_T1)} offen")
            e(f"v_min_u32 {v(t1)}, {3*1024+384}, {v(t1)}\ns_lshl_b32 {s(S_T1)}, {s(S_WV)}, 12\ns_add_u32 {s(S_T1)}, {s(S_T1)}, {s(S_T2)}")
            e(f"buffer_load_dword {v(self.vtouch+1)}, {v(t1)}, {s(SWO,4)}, {s(S_T1)} offen")

    def q_epilogue_queue(self):
        e, V, fill = self.e, self.V, self.fill
        A = self.accq
        self.vq = vq = V.alloc(8, 4)
        kv = V.alloc(16, 4)
        self.vg = V.alloc(2, 2)
        self.vinv = V.alloc(2, 2)
        vad, vld = V.alloc(1), V.alloc(1)
        L = []
        L.append(f"s_lshl_b32 {s(S_T1)}, {s(S_J)}, 6\ns_add_u32 {s(S_T1)}, {s(S_T1)}, {s(S_GB)}\ns_lshl_b32 {s(S_T1)}, {s(S_T1)}, 12\nv_add_u32 {v(vad)}, {s(S_T1)}, {v(self.vl16)}")
        L.append(f"s_add_u32 {s(S_T1)}, {s(S_MX)}, {KVB+8*4096}\nv_add_u32 {v(vld)}, {s(S_T1)}, {v(self.vl16)}")
        for b in range(4):
            src = A + 16 + 8*b
            L.append("\n".join(f"v_cvt_pk_bf16_f32 {v(kv+4*b+i)}, {v(src+2*i)}, {v(src+2*i+1)}" for i in range(4)))
            L.append((f"buffer_store_dwordx4 {v(kv+4*b,4)}, {v(vad)}, {s(SWS,4)}, 0 offen offset:{KVOFF+b*1024} sc1", "kvst"))
            L.append(f"ds_write_b128 {v(vld)}, {v(kv+4*b,4)} offset:{b*1024}")
        c = 0.25 * math.log2(math.e)
        L.append(f"s_mov_b32 {s(S_C0)}, {f2u(c):#x}\ns_mov_b32 {s(S_C0+1)}, {f2u(c):#x}")
        for i in range(0, 8, 2):
            L.append("\n".join(f"v_pk_mul_f32 {v(A+2*k,2)}, {v(A+2*k,2)}, {s(S_C0,2)}\nv_cvt_pk_bf16_f32 {v(vq+k)}, {v(A+2*k)}, {v(A+2*k+1)}" for k in (i, i+1)))
        z, g, inv = A + 48, self.vg, self.vinv
        L.append(f"v_cvt_pk_bf16_f32 {v(z)}, {v(z)}, {v(z)}\nv_and_b32 {v(z)}, 0xffff0000, {v(z)}\nv_mul_f32 {v(z)}, {f2u(-math.log2(math.e)):#x}, {v(z)}\nv_exp_f32 {v(z)}, {v(z)}")
        L.append(f"v_add_f32 {v(z)}, 1.0, {v(z)}\nv_rcp_f32 {v(z)}, {v(z)}")
        L.append(f"v_cvt_pk_bf16_f32 {v(z)}, {v(z)}, {v(z)}\nv_and_b32 {v(g)}, 0xffff0000, {v(z)}\nv_sub_f32 {v(z)}, 1.0, {v(g)}\nv_cvt_pk_bf16_f32 {v(z)}, {v(z)}, {v(z)}")
        L.append(f"v_and_b32 {v(z)}, 0xffff0000, {v(z)}\nv_rcp_f32 {v(z)}, {v(z)}")
        L.append(f"v_min_f32 {v(inv)}, {f2u(2.0**120):#x}, {v(z)}\nv_mov_b32 {v(inv+1)}, {v(inv)}\nv_mov_b32 {v(g+1)}, {v(g)}")
        def rel():
            V.release(kv, 16); V.release(vad, 1); V.release(vld, 1); V.release(A, 64)
        for x in L: fill.append(x if isinstance(x, tuple) else (x, None))
        fill.append(rel)

    def wf_setup(self):
        e, V = self.e, self.V
        t0, t1 = self.t0, self.t1
        self.vwa = vwa = V.alloc(4, 1)
        e(f"v_lshrrev_b32 {v(t1)}, 3, v0\nv_lshlrev_b32 {v(t1)}, 10, {v(t1)}\ns_lshl_b32 {s(S_T2)}, {s(S_CB)}, 7\nv_add_u32 {v(vwa)}, {s(S_T2)}, {v(t1)}")
        e(f"v_bfe_u32 {v(t1)}, v0, 4, 1\nv_lshlrev_b32 {v(t1)}, 2, {v(t1)}\nv_and_b32 {v(vwa+1)}, 7, v0\nv_xor_b32 {v(t1)}, {v(t1)}, {v(vwa+1)}\nv_lshl_add_u32 {v(vwa)}, {v(t1)}, 4, {v(vwa)}")
        for t in range(1, 4): e(f"v_add_u32 {v(vwa+t)}, {7168*t}, {v(vwa)}")
        e(f"s_mul_i32 {s(S_RING)}, {s(S_W)}, {WRING}")
        self.vwf = vwf = V.alloc(2, 1)
        e(f"v_lshrrev_b32 {v(t1)}, 5, v0\nv_lshlrev_b32 {v(t1)}, 10, {v(t1)}\nv_bfe_u32 {v(vwf)}, v0, 2, 2\nv_lshl_add_u32 {v(t1)}, {v(vwf)}, 7, {v(t1)}")
        e(f"v_bfe_u32 {v(vwf)}, v0, 3, 1\nv_lshl_add_u32 {v(t1)}, {v(vwf)}, 6, {v(t1)}\nv_bfe_u32 {v(vwf)}, v0, 4, 1\nv_lshl_add_u32 {v(t1)}, {v(vwf)}, 5, {v(t1)}")
        e(f"v_and_b32 {v(vwf)}, 3, v0\nv_lshl_add_u32 {v(t1)}, {v(vwf)}, 3, {v(t1)}\nv_xor_b32 {v(vwf+1)}, 64, {v(t1)}")
        e(f"v_add_u32 {v(vwf)}, {s(S_RING)}, {v(t1)}\nv_add_u32 {v(vwf+1)}, {s(S_RING)}, {v(vwf+1)}")
        e(f"s_mul_i32 {s(S_XO)}, {s(S_W)}, {22*16*1024}\ns_lshl_b32 {s(S_WO)}, {s(S_W)}, 17")

    def wf_dma(self, g):
        L = []
        srd, so, k = (SWD, S_XO, g) if g < 11 else (SWO, S_WO, g - 11)
        for t in range(4):
            p = f"s_add_u32 m0, {s(S_RING)}, {(g % 6)*4096}\ns_add_u32 {s(S_T3)}, {s(so)}, {k*32768}\n" if t == 0 else ""
            L.append((p + f"buffer_load_dwordx4 {v(self.vwa+t)}, {s(srd,4)}, {s(S_T3)} offen offset:{t*1024} lds", f"w{g}"))
        return L

    def wf_reads(self, g, dst):
        L = []
        for u in range(2):
            for ct in range(2):
                off = (g % 6)*4096 + u*2048
                r = dst + 8*u + 4*ct
                L.append(f"ds_read_b64_tr_b16 {a(r,2)}, {v(self.vwf+ct)} offset:{off}")
                L.append(f"ds_read_b64_tr_b16 {a(r+2,2)}, {v(self.vwf+ct)} offset:{off+512}")
        return L

    def f_epilogue(self):
        e, V = self.e, self.V
        A = self.accf
        self.stamp()
        self.wf_setup()
        e.wait_all(vm=False, lg=True)
        e("s_barrier")
        fill = []
        for g in range(6): fill += self.wf_dma(g)
        vad = V.alloc(2, 1)
        out = V.alloc(8, 4)
        e(f"s_mul_i32 {s(S_T1)}, {s(S_GB)}, 86\ns_lshl_b32 {s(S_T2)}, {s(self.S_PO)}, 1\ns_add_u32 {s(S_T1)}, {s(S_T1)}, {s(S_T2)}\ns_lshl_b32 {s(S_T1)}, {s(S_T1)}, 10\ns_add_u32 {s(S_T1)}, {s(S_T1)}, {HOFF}")
        e(f"v_add_u32 {v(vad)}, {s(S_T1)}, {v(self.vl16)}\nv_add_u32 {v(vad+1)}, 4096, {v(vad)}\nv_or_b32 {v(vad+1)}, {s(self.S_NP2)}, {v(vad+1)}")
        c = -math.log2(math.e)
        e(f"s_mov_b32 {s(S_C0)}, {f2u(c):#x}\ns_mov_b32 {s(S_C0+1)}, {f2u(c):#x}")
        inv = self.vinv
        for p in range(3):
            for half in range(2):
                G, U = A + 16*p + 8*half, A + 48 + 16*p + 8*half
                o_ = out + 4*half
                for i in range(4): e(f"v_pk_mul_f32 {v(G+2*i,2)}, {v(G+2*i,2)}, {s(S_C0,2)}")
                for i in range(8):
                    e(f"v_exp_f32 {v(G+i)}, {v(G+i)}")
                    if i in (2, 6) and fill: f = fill.pop(0); e(f[0], tag=f[1])
                for i in range(4): e(f"v_pk_fma_f32 {v(G+2*i,2)}, {v(G+2*i,2)}, {v(inv,2)}, {v(inv,2)}")
                for i in range(8):
                    e(f"v_rcp_f32 {v(G+i)}, {v(G+i)}")
                    if i in (2, 6) and fill: f = fill.pop(0); e(f[0], tag=f[1])
                for i in range(4): e(f"v_pk_mul_f32 {v(G+2*i,2)}, {v(G+2*i,2)}, {v(U+2*i,2)}")
                for i in range(4): e(f"v_cvt_pk_bf16_f32 {v(o_+i)}, {v(G+2*i)}, {v(G+2*i+1)}")
                st = 2*p + half
                ad, off = (vad, st*1024) if st < 4 else (vad+1, (st-4)*1024)
                e(f"buffer_store_dwordx4 {v(o_,4)}, {v(ad)}, {s(SWS,4)}, 0 offen offset:{off} sc1", tag="hst")
        for f in fill: e(f[0], tag=f[1])
        V.release(A, 96); V.release(vad, 2); V.release(out, 8); V.release(inv, 2)

    def attention(self):
        e, V, o = self.e, self.V, self.o
        t0, t1, t2 = self.t0, self.t1, self.t2
        self.stamp()
        md, mo, cz = V.alloc(16, 4), V.alloc(16, 4), V.alloc(16, 4)
        S = [V.alloc(16, 4), V.alloc(16, 4)]
        P = [V.alloc(8, 4), V.alloc(8, 4)]
        O = [V.alloc(16, 4), V.alloc(16, 4)]
        Kf = [V.alloc(4, 4) for _ in range(3)]
        Vf = [[V.alloc(8, 4) for _ in range(2)] for _ in range(2)]
        vkv = V.alloc(1)
        self.att = dict(md=md, mo=mo, cz=cz, S=S, P=P, O=O, Kf=Kf, Vf=Vf, vkv=vkv)
        NEG = f2u(-1.0e30)
        e(f"s_add_u32 {s(S_T1)}, {s(S_MX)}, {KVB}\nv_add_u32 {v(vkv)}, {s(S_T1)}, {v(self.vl16)}")
        e(f"v_and_b32 {v(t0)}, 31, v0\nv_lshrrev_b32 {v(t1)}, 5, v0\nv_lshlrev_b32 {v(t1)}, 2, {v(t1)}\nv_sub_u32 {v(t0)}, {v(t0)}, {v(t1)}\nv_mov_b32 {v(t1)}, {NEG:#x}\nv_mov_b32 {v(t2)}, 0")
        for i in range(16):
            e(f"v_cmp_le_i32 vcc, {8*(i>>2)+(i&3)}, {v(t0)}\nv_mov_b32 {v(cz+i)}, 0")
            e(f"v_mov_b32 {v(Vf[i>>3][0]+(i&7))}, 0x3f803f80")
            e(f"v_cndmask_b32 {v(md+i)}, {v(t1)}, {v(t2)}, vcc\nv_cndmask_b32 {v(mo+i)}, {v(t2)}, {v(t1)}, vcc")
            e(f"v_mov_b32 {v(Vf[i>>3][1]+(i&7))}, 0x3f803f80")
        e.wait_tag("halo"); e.wait_all(vm=False, lg=True)
        e("s_barrier")
        self.stamp()
        items = [(8 - t//2, t & 1) for t in range(18)]
        def kread(t):
            b, hd = items[t]
            return f"ds_read_b128 {v(Kf[t%3],4)}, {v(vkv)} offset:{b*4096+hd*1024}"
        def vread(t):
            b, hd = items[t]
            r = Vf[hd][(t >> 1) & 1]
            m = S_MA if hd == 0 else S_MB
            return (f"s_mov_b64 exec, {s(m,2)}\nds_read_b128 {v(r,4)}, {v(vkv)} offset:{b*4096+2048}\n"
                    f"ds_read_b128 {v(r+4,4)}, {v(vkv)} offset:{b*4096+3072}\ns_mov_b64 exec, -1")
        def qk(t):
            b, hd = items[t]
            C = md if b == 8 else (mo if b == 0 else cz)
            if hd == 0 and b < 8:
                lf, lb = f"L_fix_{b}", f"L_fixb_{b}"
                e(f"s_cmp_eq_u32 {s(S_GB)}, {7-b}\ns_cbranch_scc1 {lf}")
                e.label(lb)
                def out(lf=lf, lb=lb):
                    e.label(lf); e.fence_hazards()
                    for i in range(16): e.raw(f"    v_mov_b32 {v(cz+i)}, {NEG:#x}\n    v_mov_b32 {v(mo+i)}, {NEG:#x}")
                    e.raw(f"    s_nop 1\n    s_branch {lb}")
                self.tail.append(out)
            e(f"{MF} {v(S[t&1],16)}, {v(Kf[t%3],4)}, {v(self.vq+4*hd,4)}, {v(C,16)}")
        fill = []
        def add_group(g):
            def w(g=g): e.wait_tag(f"w{g}")
            fill.append(w)
            rs = self.wf_reads(g, 16*g)
            for k in range(0, 8, 2): fill.append((rs[k] + "\n" + rs[k+1], f"r{g}"))
            def w2(g=g): e.wait_tag(None, f"r{g}")
            fill.append(None)
            fill.append(w2)
            for x in self.wf_dma(g + 6): fill.append(x)
        self.vfl = vfl = V.alloc(2, 1)
        def pub_h():
            e.wait_tag("hst")
            e(f"s_lshl_b32 {s(S_T1)}, {s(S_R)}, 12\ns_lshr_b32 {s(S_T2)}, {s(S_W)}, 1\ns_lshl_b32 {s(S_T2)}, {s(S_T2)}, 9\ns_add_u32 {s(S_T1)}, {s(S_T1)}, {s(S_T2)}")
            e(f"s_lshr_b32 {s(S_T2)}, {s(S_J)}, 2\ns_lshl_b32 {s(S_T2)}, {s(S_T2)}, 7\ns_add_u32 {s(S_T1)}, {s(S_T1)}, {s(S_T2)}\ns_add_u32 s3, {s(S_T1)}, {FLAGOFF}")
            e(f"v_mov_b32 {v(vfl)}, s3\ns_mov_b64 exec, 1")
            e(f"buffer_atomic_add {v(self.vone)}, {v(vfl)}, {s(SWS,4)}, 0 offen sc1\ns_mov_b64 exec, -1")
            e(f"s_lshr_b32 {s(S_T1)}, {s(S_RB)}, 1\ns_lshl_b32 {s(S_T1)}, {s(S_T1)}, 12\ns_and_b32 {s(S_T2)}, {s(S_RB)}, 1\ns_lshl_b32 {s(S_T2)}, {s(S_T2)}, 9\ns_add_u32 {s(S_T1)}, {s(S_T1)}, {s(S_T2)}")
            e(f"s_lshl_b32 {s(S_T2)}, {s(S_W)}, 7\ns_add_u32 {s(S_T1)}, {s(S_T1)}, {s(S_T2)}\ns_add_u32 {s(S_T1)}, {s(S_T1)}, {FLAGOFF}\nv_mov_b32 {v(vfl)}, {s(S_T1)}")
        add_group(0); add_group(1)
        fill.append(pub_h)
        for g in range(2, 9): add_group(g)
        fill.append((f"buffer_load_dword {v(vfl+1)}, {v(vfl)}, {s(SWS,4)}, 0 offen sc1", None))
        nslots = 17 * 6
        per = len(fill) / nslots
        state = dict(acc=0.0)
        def slot():
            state["acc"] += per
            while state["acc"] >= 1.0 and fill:
                state["acc"] -= 1.0
                f = fill.pop(0)
                if f is None: continue
                if callable(f): f()
                else: e(f[0], tag=f[1])
        e(kread(0)); e(kread(1)); e(vread(0))
        qk(0)
        for t in range(18):
            b, hd = items[t]
            Sx, Px = S[t & 1], P[t & 1]
            if t + 2 < 18: e(kread(t + 2))
            if t + 1 < 18:
                e(vread(t + 1))
                qk(t + 1)
            vr = Vf[hd][(t >> 1) & 1]
            cin = "0" if t < 2 else v(O[hd], 16)
            for half in range(2):
                for i in range(8):
                    e(f"v_exp_f32 {v(Sx+8*half+i)}, {v(Sx+8*half+i)}")
                    if i in (1, 4): slot()
                for i in range(4): e(f"v_cvt_pk_bf16_f32 {v(Px+4*half+i)}, {v(Sx+8*half+2*i)}, {v(Sx+8*half+2*i+1)}")
                slot()
                if half == 1:
                    e(f"{MF} {v(O[hd],16)}, {v(vr,4)}, {v(Px,4)}, {cin}")
                    e(f"{MF} {v(O[hd],16)}, {v(vr+4,4)}, {v(Px+4,4)}, {v(O[hd],16)}")
        while fill:
            state["acc"] = 1.0; slot()
        self.stamp()
        l0, l1 = O[0] + 8, O[1]
        e(f"v_max3_f32 {v(t0)}, abs({v(O[0])}), abs({v(O[0]+1)}), abs({v(O[0]+2)})")
        regs = [O[0]+i for i in range(3, 8)] + [O[1]+8+i for i in range(8)]
        for k in range(0, 12, 2): e(f"v_max3_f32 {v(t0)}, {v(t0)}, abs({v(regs[k])}), abs({v(regs[k+1])})")
        e(f"v_max_f32 {v(t1)}, {v(l0)}, {v(l1)}\nv_mul_f32 {v(t1)}, {f2u(2.0**97):#x}, {v(t1)}\nv_max3_f32 {v(t0)}, {v(t0)}, abs({v(regs[12])}), {v(t1)}")
        e(f"v_min_f32 {v(t2)}, {v(l0)}, {v(l1)}\nv_add_f32 {v(t1)}, {v(l0)}, {v(l1)}")
        e(f"v_cmp_nlt_f32 vcc, {f2u(2.0**-30):#x}, {v(t2)}\ns_mov_b64 {s(S_C0,2)}, vcc")
        e(f"v_cmp_nlt_f32 vcc, 0, {v(t1)}\ns_or_b64 {s(S_C0,2)}, {s(S_C0,2)}, vcc")
        e(f"v_cmp_ngt_f32 vcc, {f2u(2.0**127):#x}, {v(t0)}\ns_or_b64 vcc, {s(S_C0,2)}, vcc")
        if o["force_slow"]: e("s_branch L_slow")
        else: e("s_cbranch_vccnz L_slow")
        e.label("L_slow_back")
        self.tail.append(self.slow_attention)
        vad = V.alloc(1)
        e(f"s_lshl_b32 {s(S_T1)}, {s(S_GB)}, 5\ns_lshl_b32 {s(S_T2)}, {s(S_J)}, 1\ns_add_u32 {s(S_T1)}, {s(S_T1)}, {s(S_T2)}\ns_lshl_b32 {s(S_T1)}, {s(S_T1)}, 10\ns_add_u32 {s(S_T1)}, {s(S_T1)}, {OOFF}")
        e(f"v_rcp_f32 {v(S[0])}, {v(l0)}\nv_rcp_f32 {v(S[0]+2)}, {v(l1)}\nv_add_u32 {v(vad)}, {s(S_T1)}, {v(self.vl16)}")
        for hd in range(2):
            e(f"v_mul_f32 {v(S[0]+2*hd)}, {v(self.vg)}, {v(S[0]+2*hd)}")
        for hd in range(2):
            src = O[hd] + 8*hd
            for i in range(4): e(f"v_pk_mul_f32 {v(src+2*i,2)}, {v(src+2*i,2)}, {v(S[0]+2*hd,2)} op_sel_hi:[1,0]")
            for i in range(4): e(f"v_cvt_pk_bf16_f32 {v(P[hd]+i)}, {v(src+2*i)}, {v(src+2*i+1)}")
            e(f"buffer_store_dwordx4 {v(P[hd],4)}, {v(vad)}, {s(SWS,4)}, 0 offen offset:{hd*1024} sc1", tag="ost")
        self.att_release = [(md,16),(mo,16),(cz,16),(S[0],16),(S[1],16),(O[0],16),(O[1],16),(vkv,1),(vad,1),(self.vq,8),(self.vg,2)] + \
            [(k,4) for k in Kf] + [(x,8) for y in Vf for x in y]
        self.att_release2 = [(P[0],8),(P[1],8)]

    def slow_attention(self):
        e = self.e
        A = self.att
        md, mo, cz, S, P, O, Kf, Vf, vkv = (A[k] for k in ("md","mo","cz","S","P","O","Kf","Vf","vkv"))
        t0, t1, t2 = self.t0, self.t1, self.t2
        R = e.raw
        R("L_slow:")
        R("    s_waitcnt lgkmcnt(0)\n    s_nop 15\n    s_nop 3")
        NEG = f2u(-1.0e30)
        for hd in range(2):
            q = v(self.vq+4*hd, 4)
            mask = S_MA if hd == 0 else S_MB
            for ps in range(2):
                def block(C):
                    R(f"    ds_read_b128 {v(Kf[0],4)}, {v(t2)} offset:{hd*1024}")
                    if ps == 1:
                        R(f"    s_mov_b64 exec, {s(mask,2)}\n    ds_read_b128 {v(Vf[hd][0],4)}, {v(t2)} offset:2048\n    ds_read_b128 {v(Vf[hd][0]+4,4)}, {v(t2)} offset:3072\n    s_mov_b64 exec, -1")
                    R(f"    s_waitcnt lgkmcnt(0)\n    {MF} {v(S[0],16)}, {v(Kf[0],4)}, {q}, {C}\n    s_nop 15")
                    if ps == 0:
                        for i in range(0, 16, 2): R(f"    v_max3_f32 {v(t0)}, {v(t0)}, {v(S[0]+i)}, {v(S[0]+i+1)}")
                    else:
                        for i in range(16): R(f"    v_sub_f32 {v(S[0]+i)}, {v(S[0]+i)}, {v(t0)}")
                        for i in range(16): R(f"    v_exp_f32 {v(S[0]+i)}, {v(S[0]+i)}")
                        R("    s_nop 0")
                        for i in range(8): R(f"    v_cvt_pk_bf16_f32 {v(P[0]+i)}, {v(S[0]+2*i)}, {v(S[0]+2*i+1)}")
                        R(f"    s_nop 1\n    {MF} {v(O[hd],16)}, {v(Vf[hd][0],4)}, {v(P[0],4)}, {v(O[hd],16)}")
                        R(f"    {MF} {v(O[hd],16)}, {v(Vf[hd][0]+4,4)}, {v(P[0]+4,4)}, {v(O[hd],16)}\n    s_nop 15")
                    R(f"    v_subrev_u32 {v(t2)}, 4096, {v(t2)}")
                n = f"L_sl_{hd}_{ps}"
                if ps == 0:
                    R(f"    v_mov_b32 {v(t0)}, {NEG:#x}")
                else:
                    for i in range(16): R(f"    v_mov_b32 {v(O[hd]+i)}, 0")
                R(f"    v_add_u32 {v(t2)}, {8*4096}, {v(vkv)}\n    s_min_u32 {s(S_CNT)}, {s(S_GB)}, 7")
                block(v(md, 16))
                R(f"{n}_loop:\n    s_cmp_eq_u32 {s(S_CNT)}, 0\n    s_cbranch_scc1 {n}_old")
                block("0")
                R(f"    s_sub_u32 {s(S_CNT)}, {s(S_CNT)}, 1\n    s_branch {n}_loop\n{n}_old:")
                R(f"    s_cmp_lt_u32 {s(S_GB)}, 8\n    s_cbranch_scc1 {n}_done")
                block(v(mo, 16))
                R(f"{n}_done:")
                if ps == 0:
                    R(f"    v_mov_b32 {v(t1)}, {v(t0)}\n    s_nop 1\n    v_permlane32_swap_b32 {v(t0)}, {v(t1)}\n    s_nop 1\n    v_max_f32 {v(t0)}, {v(t0)}, {v(t1)}")
        R("    s_nop 15\n    s_branch L_slow_back")

    def final(self):
        e, V, o = self.e, self.V, self.o
        t0, t1, t2 = self.t0, self.t1, self.t2
        for r, n in self.att_release: V.release(r, n)
        acc = V.alloc(64, 4)
        NB = 12
        ring = V.alloc(8*NB, 4)
        vh = V.alloc(4, 1)
        vo = V.alloc(2, 1)
        vfl = self.vfl
        e(f"s_lshl_b32 {s(S_T1)}, {s(S_RB)}, 1\ns_mul_i32 {s(S_T1)}, {s(S_T1)}, 86\ns_mul_i32 {s(S_T2)}, {s(S_W)}, 22\ns_add_u32 {s(S_T1)}, {s(S_T1)}, {s(S_T2)}\ns_lshl_b32 {s(S_T1)}, {s(S_T1)}, 10\ns_add_u32 {s(S_T1)}, {s(S_T1)}, {HOFF}")
        e(f"v_add_u32 {v(vh)}, {s(S_T1)}, {v(self.vl16)}\nv_add_u32 {v(vh+1)}, {86*1024}, {v(vh)}")
        e(f"s_cmp_eq_u32 {s(S_W)}, 3\ns_cselect_b32 {s(S_T2)}, {OOB}, 0\nv_or_b32 {v(vh+2)}, {s(S_T2)}, {v(vh)}\nv_or_b32 {v(vh+3)}, {s(S_T2)}, {v(vh+1)}")
        e(f"s_lshl_b32 {s(S_T1)}, {s(S_RB)}, 6\ns_lshl_b32 {s(S_T2)}, {s(S_W)}, 3\ns_add_u32 {s(S_T1)}, {s(S_T1)}, {s(S_T2)}\ns_lshl_b32 {s(S_T1)}, {s(S_T1)}, 10\ns_add_u32 {s(S_T1)}, {s(S_T1)}, {OOFF}")
        e(f"v_add_u32 {v(vo)}, {s(S_T1)}, {v(self.vl16)}\nv_add_u32 {v(vo+1)}, {32*1024}, {v(vo)}")
        self.poll("h", vfl, SWS, vfl+1, "8")
        self.stamp()
        for r, n in self.att_release2: V.release(r, n)
        def bload(i):
            L = []
            r = ring + 8*(i % NB)
            if i < 22: base, k = (vh if i < 20 else vh + 2), i
            else: base, k = vo, i - 22
            pre = f"s_mov_b32 {s(S_T2)}, {(k//4)*4096}\n" if k % 4 == 0 else ""
            for t in range(2):
                L.append((pre if t == 0 else "") + f"buffer_load_dwordx4 {v(r+4*t,4)}, {v(base+t)}, {s(SWS,4)}, {s(S_T2)} offen offset:{(k%4)*1024} sc1")
            return L
        def wreg(i):
            g, u = i // 2, i % 2
            gg = g if g < 9 else g - 9
            return 16*gg + 8*u
        nissued = 0
        def issue_to(n):
            nonlocal nissued
            while nissued < n:
                if nissued == 22:
                    self.stamp()
                    e(f"v_add_u32 {v(vfl)}, {8*128}, {v(vfl)}")
                    e(f"buffer_load_dword {v(vfl+1)}, {v(vfl)}, {s(SWS,4)}, 0 offen sc1")
                    self.poll("o", vfl, SWS, vfl+1, "8")
                    self.stamp()
                for x in bload(nissued): e(x)
                nissued += 1
        issue_to(4)
        e.wait_tag("ost")
        e(f"s_add_u32 s3, s3, {8*128}\nv_mov_b32 {v(t0)}, s3\ns_mov_b64 exec, 1")
        e(f"buffer_atomic_add {v(self.vone)}, {v(t0)}, {s(SWS,4)}, 0 offen sc1\ns_mov_b64 exec, -1")
        issue_to(NB - 1)
        for i in range(30):
            g = i // 2
            r = ring + 8*(i % NB)
            w = wreg(i)
            for rt in range(2):
                for ct in range(2):
                    d = acc + 32*rt + 16*ct
                    cin = "0" if i == 0 else v(d, 16)
                    e(f"{MF} {v(d,16)}, {a(w+4*ct,4)}, {v(r+4*rt,4)}, {cin}")
            if i % 2 == 1 and g + 9 < 15:
                e.wait_tag(f"w{g+9}")
                for x in self.wf_reads(g + 9, 16*g): e(x)
            lim = i + NB
            if i < 21: lim = min(lim, 22)
            issue_to(min(30, lim))
        self.stamp()
        e.wait_all(vm=False, lg=True)
        e("s_barrier")
        e(f"v_and_b32 {v(t0)}, 31, v0\nv_mul_u32_u24 {v(t0)}, {REDROW}, {v(t0)}\nv_lshrrev_b32 {v(t1)}, 5, v0\nv_lshl_add_u32 {v(t0)}, {v(t1)}, 4, {v(t0)}")
        e(f"s_mul_i32 {s(S_T1)}, {s(S_W)}, {64*REDROW}\nv_add_u32 {v(t0)}, {s(S_T1)}, {v(t0)}")
        for rt in range(2):
            for ct in range(2):
                for q in range(4):
                    d = acc + 32*rt + 16*ct + 4*q
                    e(f"ds_write_b128 {v(t0)}, {v(d,4)} offset:{rt*32*REDROW + (32*ct+8*q)*4}")
        e(f"v_lshrrev_b32 {v(t1)}, 3, v0\ns_lshl_b32 {s(S_T1)}, {s(S_W)}, 4\nv_add_u32 {v(t1)}, {s(S_T1)}, {v(t1)}")
        e(f"v_and_b32 {v(t2)}, 7, v0\nv_mul_u32_u24 {v(t0)}, {REDROW}, {v(t1)}\nv_lshl_add_u32 {v(t0)}, {v(t2)}, 5, {v(t0)}")
        e(f"s_lshl_b32 {s(S_T1)}, {s(S_RB)}, 16\ns_lshl_b32 {s(S_T2)}, {s(S_CB)}, 7\ns_add_u32 {s(S_T1)}, {s(S_T1)}, {s(S_T2)}\nv_lshlrev_b32 {v(t1)}, 10, {v(t1)}\nv_lshl_add_u32 {v(t1)}, {v(t2)}, 4, {v(t1)}\nv_add_u32 {v(t1)}, {s(S_T1)}, {v(t1)}")
        e.wait_all(vm=False, lg=True)
        e("s_barrier")
        for i in range(2):
            for w in range(4):
                for k in range(2):
                    e(f"ds_read_b128 {v(ring+32*i+8*w+4*k,4)}, {v(t0)} offset:{w*64*REDROW + i*8*REDROW + 16*k}")
        for i in range(2):
            b = ring + 32*i
            for k in range(4):
                e(f"v_pk_add_f32 {v(b+2*k,2)}, {v(b+2*k,2)}, {v(b+8+2*k,2)}\nv_pk_add_f32 {v(b+16+2*k,2)}, {v(b+16+2*k,2)}, {v(b+24+2*k,2)}")
            for k in range(4): e(f"v_pk_add_f32 {v(b+2*k,2)}, {v(b+2*k,2)}, {v(b+16+2*k,2)}")
            for k in range(4): e(f"v_cvt_pk_bf16_f32 {v(b+8+k)}, {v(b+2*k)}, {v(b+2*k+1)}")
            so = "0" if i == 0 else s(S_T2)
            if i == 1: e(f"s_mov_b32 {s(S_T2)}, 8192")
            e(f"buffer_store_dwordx4 {v(b+8,4)}, {v(t1)}, {s(SOUT,4)}, {so} offen")
        self.stamp()
        if o["stamps"]:
            e.force_wait("s_waitcnt vmcnt(0)")
            self.stamp()
            e(f"s_memrealtime s[4:5]")
            e.force_wait("s_waitcnt lgkmcnt(0)")
            e(f"v_mov_b32 {v(t0)}, s4\nv_accvgpr_write_b32 {a(224+15)}, {v(t0)}")
            e(f"s_lshl_b32 {s(S_T1)}, s2, 2\ns_add_u32 {s(S_T1)}, {s(S_T1)}, {s(S_W)}\ns_lshl_b32 {s(S_T1)}, {s(S_T1)}, 6\ns_add_u32 {s(S_T1)}, {s(S_T1)}, {STAMPOFF}\nv_mov_b32 {v(t0)}, {s(S_T1)}")
            for k in range(4): e(f"buffer_store_dwordx4 {a(224+4*k,4)}, {v(t0)}, {s(SWS,4)}, 0 offen offset:{16*k}")

    def build(self):
        e = self.e
        self.prologue()
        self.stage1()
        self.f_epilogue()
        self.attention()
        self.final()
        if self.o["probe"] is not None:
            if self.o["probe"] < 0: e("s_mov_b32 s6, s100")
            e("s_sub_u32 s6, s6, s100\ns_mul_i32 s6, s6, 10\ns_add_u32 s6, s6, 6000\ns_mov_b32 s93, 0")
            e.label("L_probe")
            e.raw("    s_memrealtime s[4:5]\n    s_add_u32 s93, s93, 1\n    s_waitcnt lgkmcnt(0)\n    s_sub_u32 s4, s4, s100\n    s_cmp_gt_u32 s93, 0x100000\n    s_cbranch_scc1 L_end\n    s_cmp_lt_u32 s4, s6\n    s_cbranch_scc1 L_probe")
        e.label("L_end")
        e("s_endpgm")
        e.label("L_hot_end")
        for f in self.tail: f()
        hdr = open("gated_mix__sliding_block__glu_gated_glu__prompt.s.ref").read().split("; Override")[0] if self.o.get("hdr", True) else ""
        t = hdr + f"; @launch grid=(256,1,1) block=(256,1,1) lds={LDS_BYTES}\n"
        t += '.amdgcn_target "amdgcn-amd-amdhsa--gfx950"\n.text\n'
        t += f".globl {KNAME}\n.p2align 8\n.type {KNAME},@function\n{KNAME}:\n" + e.text()
        t += f'''.section .rodata,"a"
.p2align 6
.amdhsa_kernel {KNAME}
  .amdhsa_next_free_vgpr 512
  .amdhsa_next_free_sgpr 102
  .amdhsa_accum_offset 256
  .amdhsa_group_segment_fixed_size 0
  .amdhsa_kernarg_size 88
  .amdhsa_user_sgpr_count 2
  .amdhsa_user_sgpr_kernarg_segment_ptr 1
  .amdhsa_system_sgpr_workgroup_id_x 1
  .amdhsa_float_denorm_mode_32 3
.end_amdhsa_kernel
'''
        return t


if __name__ == "__main__":
    out = sys.argv[1]
    kw = {}
    for x in sys.argv[2:]:
        k, val = x.split("=")
        kw[k] = int(val) if val.lstrip("-").isdigit() else val
    g = Gen(**kw)
    t = g.build()
    open(out, "w").write(t)
    print("vgpr hi", g.V.hi, "nops", g.e.nops, "lines", t.count("\n"), "stamps", g.nst)
```

```python
import sys, math, struct
from emit import Emit, Regs

KNAME = "gated_mix__sliding_block__glu_gated_glu__prompt_kernel"

KVOFF = 0
HOFF = 4 << 20
OOFF = 10 << 20
FLAGOFF = 12 << 20
STAMPOFF = 13 << 20
WS_USED = 14 << 20
OOB = 0x80000000

SLOT = 28672
NSLOT = 5
KVB = 110592
GWB = 159744
ZB = GWB + 2048
LDS_BYTES = 163840
WRING = 27648
REDROW = 272
BIAS = 4096

def f2u(x):
    return struct.unpack("<I", struct.pack("<f", x))[0]

def v(i, n=1): return f"v{i}" if n == 1 else f"v[{i}:{i+n-1}]"
def a(i, n=1): return f"a{i}" if n == 1 else f"a[{i}:{i+n-1}]"
def s(i, n=1): return f"s{i}" if n == 1 else f"s[{i}:{i+n-1}]"
def phys(c): return ((c + 2) % NSLOT) * SLOT

MF = "v_mfma_f32_32x32x16_bf16"

SX, SWQ, SWG, SWU, SWD, SWO, SWS, SOUT, SDBG, SGW = 8, 12, 16, 20, 24, 28, 32, 36, 40, 44
SP = 48
S_W, S_R, S_J, S_ROT, S_RB, S_CB = 70, 71, 72, 73, 74, 75
S_T0, S_T1, S_T2, S_T3 = 76, 77, 78, 79
S_XO, S_WO = 80, 81
S_MX, S_MW = 82, 83
S_GB = 84
S_MA, S_MB = 86, 88
S_C0 = 90
S_RING = 92
S_CNT = 93
S_WV = 94
S_ST = 96


class Gen:
    def __init__(self, stamps=False, force_slow=False, look=2, fmap="4x8", rot=True, touch=True, codepf=True, probe=None, fine=0, outsc='', pre=0, post=0):
        self.o = dict(stamps=stamps, force_slow=force_slow, look=look, fmap=fmap, rot=rot, touch=touch, codepf=codepf, probe=probe, fine=fine, outsc=outsc, pre=pre, post=post)
        self.e = Emit()
        self.V = Regs(256, 1)
        self.tail = []
        self.nst = 0

    def stamp(self):
        if self.o["probe"] is not None:
            if self.o["probe"] == self.nst:
                self.e.force_wait("s_waitcnt lgkmcnt(0)")
                self.e("s_memrealtime s[6:7]")
                self.e.force_wait("s_waitcnt lgkmcnt(0)")
            self.nst += 1
            return
        if not self.o["stamps"]: return
        e = self.e
        e.force_wait("s_waitcnt lgkmcnt(0)")
        e(f"s_memtime {s(S_ST,2)}")
        e.force_wait("s_waitcnt lgkmcnt(0)")
        e(f"s_sub_u32 {s(S_ST)}, {s(S_ST)}, {s(S_ST+2)}")
        e(f"v_mov_b32 {v(self.vst)}, {s(S_ST)}")
        e(f"v_accvgpr_write_b32 {a(224+self.nst)}, {v(self.vst)}")
        self.nst += 1

    def srd(self, d, p, size):
        e = self.e
        e(f"s_mov_b64 {s(d,2)}, {s(p,2)}")

    def poll(self, name, vaddr, srd, vdst, target_s):
        e = self.e
        lr, lo = f"L_{name}_retry", f"L_{name}_ok"
        e(f"v_cmp_ne_u32 vcc, {target_s}, {v(vdst)}")
        e(f"s_cbranch_vccnz {lr}")
        e.label(lo)
        def out():
            e.label(lr)
            e.fence_hazards()
            e(f"s_mov_b32 {s(S_CNT)}, 0")
            e.label(lr + "_l")
            e.raw(f"    s_sleep 2")
            e.raw(f"    buffer_load_dword {v(vdst)}, {v(vaddr)}, {s(srd,4)}, 0 offen sc1")
            e.raw(f"    s_add_u32 {s(S_CNT)}, {s(S_CNT)}, 1")
            e.raw(f"    s_waitcnt vmcnt(0)")
            e.raw(f"    v_cmp_ne_u32 vcc, {target_s}, {v(vdst)}")
            e.raw(f"    s_cbranch_vccz {lo}")
            e.raw(f"    s_cmp_lt_u32 {s(S_CNT)}, 0x40000")
            e.raw(f"    s_cbranch_scc1 {lr}_l")
            e.raw(f"    s_branch {lo}")
        self.tail.append(out)

    def prologue(self):
        e, V, o = self.e, self.V, self.o
        e(f"s_cmp_ge_u32 s2, 256\ns_cbranch_scc1 L_end")
        e(f"s_load_dwordx16 {s(SP,16)}, s[0:1], 0")
        e(f"s_load_dwordx4 {s(SP+16,4)}, s[0:1], 64")
        e(f"s_load_dwordx2 {s(SP+20,2)}, s[0:1], 80")
        if o["probe"] is not None:
            e("s_memrealtime s[100:101]")
        if o["stamps"]:
            self.vst = V.alloc(1)
            e(f"s_memtime {s(S_ST+2,2)}")
        t0, t1, t2 = V.alloc(1), V.alloc(1), V.alloc(1)
        e(f"v_lshrrev_b32 {v(t0)}, 6, v0\nv_and_b32 v0, 63, v0")
        e(f"v_readfirstlane_b32 {s(S_W)}, {v(t0)}")
        e(f"s_lshr_b32 {s(S_T0)}, s2, 3")
        e(f"s_lshl_b32 {s(S_WV)}, {s(S_T0)}, 2\ns_add_u32 {s(S_WV)}, {s(S_WV)}, {s(S_W)}")
        if o["codepf"]:
            self.vpf = V.alloc(1)
            e(f"s_getpc_b64 s[4:5]")
            e.label("L_pc")
            e(f"v_and_b32 {v(t0)}, 3, v0\ns_lshl_b32 {s(S_T1)}, {s(S_WV)}, 9\nv_lshl_add_u32 {v(t0)}, {v(t0)}, 7, {s(S_T1)}")
            e(f"s_mov_b32 {s(S_T1)}, L_hot_end - L_pc - 4\nv_min_u32 {v(t0)}, {s(S_T1)}, {v(t0)}\nv_and_b32 {v(t0)}, -4, {v(t0)}")
            e(f"global_load_dword {v(self.vpf)}, {v(t0)}, s[4:5]")
        e(f"s_and_b32 {s(S_T1)}, s2, 1\ns_lshl_b32 {s(S_R)}, {s(S_T1)}, 3\ns_and_b32 {s(S_T1)}, {s(S_T0)}, 7\ns_add_u32 {s(S_R)}, {s(S_R)}, {s(S_T1)}")
        e(f"s_bfe_u32 {s(S_J)}, s2, 0x20001\ns_lshl_b32 {s(S_J)}, {s(S_J)}, 2\ns_lshr_b32 {s(S_T1)}, {s(S_T0)}, 3\ns_add_u32 {s(S_J)}, {s(S_J)}, {s(S_T1)}")
        if o["rot"]:
            e(f"s_lshl_b32 {s(S_ROT)}, {s(S_J)}, 1\ns_add_u32 {s(S_ROT)}, {s(S_ROT)}, {s(S_R)}\ns_and_b32 {s(S_ROT)}, {s(S_ROT)}, 7")
        else:
            e(f"s_mov_b32 {s(S_ROT)}, 0")
        e(f"s_lshl_b32 {s(S_GB)}, {s(S_R)}, 2\ns_add_u32 {s(S_GB)}, {s(S_GB)}, {s(S_W)}")
        self.vxa = vxa = V.alloc(4, 1)
        e(f"v_lshrrev_b32 {v(t0)}, 3, v0\ns_lshl_b32 {s(S_T1)}, {s(S_GB)}, 15\nv_lshl_add_u32 {v(t0)}, {v(t0)}, 10, {s(S_T1)}")
        e(f"v_and_b32 {v(t1)}, 7, v0\nv_lshrrev_b32 {v(t2)}, 4, v0\nv_xor_b32 {v(t1)}, {v(t1)}, {v(t2)}")
        e(f"v_lshl_add_u32 {v(vxa)}, {v(t1)}, 4, {v(t0)}")
        e(f"v_xor_b32 {v(vxa+1)}, 64, {v(vxa)}\nv_add_u32 {v(vxa+1)}, 7168, {v(vxa+1)}")
        e(f"v_add_u32 {v(vxa+2)}, {2*7168}, {v(vxa)}\nv_add_u32 {v(vxa+3)}, {2*7168}, {v(vxa+1)}")
        self.vqa = vqa = V.alloc(1)
        self.vrow = vrow = V.alloc(1)
        e(f"v_lshrrev_b32 {v(vrow)}, 2, v0\ns_lshl_b32 {s(S_T1)}, {s(S_W)}, 4\nv_add_u32 {v(vrow)}, {s(S_T1)}, {v(vrow)}")
        e(f"v_and_b32 {v(t1)}, 3, v0\nv_lshlrev_b32 {v(t1)}, 4, {v(t1)}\nv_mul_u32_u24 {v(t0)}, 3072, {v(vrow)}")
        e(f"s_lshl_b32 {s(S_T1)}, {s(S_J)}, 6\nv_add3_u32 {v(vqa)}, {v(t0)}, {v(t1)}, {s(S_T1)}")
        e(f"s_lshl_b32 {s(S_MX)}, {s(S_W)}, 12\ns_mul_i32 {s(S_MW)}, {s(S_W)}, 3072")
        for d, size in ((SX, 2048*1024), (SWQ, 512*3072), (SWS, WS_USED), (SGW, 1024)):
            e(f"s_mov_b32 {s(d+2)}, {size}\ns_mov_b32 {s(d+3)}, 0x20000")
        self.vl16 = vl16 = V.alloc(1)
        e(f"v_lshlrev_b32 {v(vl16)}, 4, v0")
        e.force_wait("s_waitcnt lgkmcnt(0)")
        e(f"s_mov_b64 {s(SX,2)}, {s(SP,2)}\ns_mov_b64 {s(SWQ,2)}, {s(SP+2,2)}")
        self.stamp()
        for ins in self.dma_chunk(0): e(ins, tag="c0")
        e(f"s_mov_b64 {s(SWS,2)}, {s(SP+20,2)}\ns_mov_b64 {s(SGW,2)}, {s(SP+14,2)}")
        e(f"s_lshl_b32 {s(S_T1)}, {s(S_W)}, 10\ns_add_u32 m0, {s(S_T1)}, {GWB}")
        e(f"s_cmp_lt_u32 {s(S_W)}, 2\ns_cselect_b32 {s(S_T1)}, 0, {OOB}\nv_or_b32 {v(t0)}, {s(S_T1)}, {v(vl16)}")
        e(f"s_cmp_eq_u32 {s(S_W)}, 3\ns_cselect_b32 {s(S_T1)}, {ZB}, m0\ns_mov_b32 m0, {s(S_T1)}")
        e(f"buffer_load_dwordx4 {v(t0)}, {s(SGW,4)}, 0 offen lds", tag="c0")
        self.vz4 = vz4 = V.alloc(4, 2)
        for i in range(4): e(f"v_mov_b32 {v(vz4+i)}, 0")
        e(f"s_or_b32 {s(S_T1)}, {s(S_J)}, {s(S_W)}\ns_cmp_eq_u32 {s(S_T1)}, 0\ns_cselect_b32 {s(S_T2)}, 0, {OOB}")
        e(f"s_lshl_b32 {s(S_T1)}, {s(S_R)}, 12\ns_add_u32 {s(S_T1)}, {s(S_T1)}, {FLAGOFF}\ns_or_b32 {s(S_T1)}, {s(S_T1)}, {s(S_T2)}")
        e(f"v_and_b32 {v(t0)}, 31, v0\nv_lshl_add_u32 {v(t0)}, {v(t0)}, 7, {s(S_T1)}")
        e(f"buffer_store_dwordx4 {v(vz4,4)}, {v(t0)}, {s(SWS,4)}, 0 offen sc1", tag="c0")
        self.vdb = vdb = V.alloc(1)
        e(f"s_lshl_b32 {s(S_T1)}, {s(S_R)}, 2\ns_or_b32 {s(S_T1)}, {s(S_T1)}, {s(S_T2)}\nv_mov_b32 {v(vdb)}, {s(S_T1)}")
        for c in range(1, o["look"]):
            for ins in self.dma_chunk(c): e(ins, tag=f"c{c}")
        e(f"s_sub_u32 {s(SWG)}, {s(SP+8)}, {BIAS}\ns_subb_u32 {s(SWG+1)}, {s(SP+9)}, 0")
        e(f"s_sub_u32 {s(SWU)}, {s(SP+10)}, {BIAS}\ns_subb_u32 {s(SWU+1)}, {s(SP+11)}, 0")
        e(f"s_mov_b64 {s(SWD,2)}, {s(SP+12,2)}\ns_mov_b64 {s(SWO,2)}, {s(SP+4,2)}\ns_mov_b64 {s(SOUT,2)}, {s(SP+16,2)}\ns_mov_b64 {s(SDBG,2)}, {s(SP+18,2)}")
        for d, size in ((SWG, 512*2752+BIAS), (SWU, 512*2752+BIAS), (SWD, 1376*1024), (SWO, 512*1024), (SOUT, 2048*1024), (SDBG, 256)):
            e(f"s_mov_b32 {s(d+2)}, {size}\ns_mov_b32 {s(d+3)}, 0x20000")
        self.vfa = vfa = V.alloc(3, 1)
        self.S_PO = S_PO = 85
        e(f"s_lshr_b32 {s(S_T1)}, {s(S_J)}, 2\ns_mul_i32 {s(S_T1)}, {s(S_T1)}, 11\ns_and_b32 {s(S_T2)}, {s(S_J)}, 3\ns_mul_i32 {s(S_T3)}, {s(S_T2)}, 3\ns_add_u32 {s(S_T1)}, {s(S_T1)}, {s(S_T3)}")
        e(f"s_cmp_eq_u32 {s(S_J)}, 15\ns_subb_u32 {s(S_PO)}, {s(S_T1)}, 0")
        e(f"s_cmp_eq_u32 {s(S_T2)}, 3\ns_cselect_b32 {s(S_T3)}, {OOB}, 0\ns_cmp_eq_u32 {s(S_J)}, 14\ns_cselect_b32 {s(95)}, {OOB}, {s(S_T3)}")
        self.S_NP2 = 95
        e(f"v_mul_u32_u24 {v(t0)}, 2752, {v(vrow)}\ns_lshl_b32 {s(S_T1)}, {s(S_PO)}, 6\ns_add_u32 {s(S_T1)}, {s(S_T1)}, {BIAS}\nv_add3_u32 {v(vfa)}, {v(t0)}, {v(t1)}, {s(S_T1)}")
        e(f"v_subrev_u32 {v(vfa+1)}, {1024-64}, {v(vfa)}\nv_subrev_u32 {v(vfa+2)}, {2*(1024-64)}, {v(vfa)}\nv_or_b32 {v(vfa+2)}, {s(self.S_NP2)}, {v(vfa+2)}")
        V.release(vrow, 1)
        self.vwr = vwr = V.alloc(3, 1)
        e(f"v_lshrrev_b32 {v(t0)}, 5, v0\nv_lshlrev_b32 {v(t0)}, 9, {v(t0)}\nv_bfe_u32 {v(t1)}, v0, 2, 2\nv_lshl_add_u32 {v(t0)}, {v(t1)}, 6, {v(t0)}")
        e(f"v_bfe_u32 {v(t1)}, v0, 4, 1\nv_lshl_add_u32 {v(t0)}, {v(t1)}, 5, {v(t0)}")
        e(f"v_and_b32 {v(t1)}, 1, v0\nv_lshl_add_u32 {v(t0)}, {v(t1)}, 4, {v(t0)}\nv_bfe_u32 {v(t1)}, v0, 1, 1\nv_lshl_add_u32 {v(vwr)}, {v(t1)}, 3, {v(t0)}")
        e(f"v_add_u32 {v(vwr+1)}, {2*SLOT}, {v(vwr)}\nv_add_u32 {v(vwr+2)}, {4*SLOT}, {v(vwr)}")
        self.vxr = vxr = V.alloc(12, 1)
        e(f"v_and_b32 {v(t0)}, 31, v0\nv_lshl_add_u32 {v(t0)}, {v(t0)}, 7, {s(S_MX)}\nv_bfe_u32 {v(t1)}, v0, 1, 3\nv_lshrrev_b32 {v(t2)}, 5, v0\nv_xor_b32 {v(t1)}, {v(t1)}, {v(t2)}")
        e(f"v_lshl_add_u32 {v(vxr)}, {v(t1)}, 4, {v(t0)}")
        for st in range(1, 4): e(f"v_xor_b32 {v(vxr+st)}, {32*st}, {v(vxr)}")
        for win in (1, 2):
            for st in range(4): e(f"v_add_u32 {v(vxr+4*win+st)}, {2*SLOT*win}, {v(vxr+st)}")
        self.vgr = vgr = V.alloc(1)
        e(f"s_lshl_b32 {s(S_T1)}, {s(S_ROT)}, 7\ns_add_u32 {s(S_T1)}, {s(S_T1)}, {GWB}\nv_lshl_add_u32 {v(t0)}, {v(t2)}, 4, {s(S_T1)}")
        e(f"v_and_b32 {v(t1)}, 27, v0\nv_cmp_eq_u32 vcc, 0, {v(t1)}\nv_mov_b32 {v(vgr)}, {ZB}\nv_cndmask_b32 {v(vgr)}, {v(vgr)}, {v(t0)}, vcc")
        if o["fmap"] == "4x8":
            e(f"s_and_b32 {s(S_RB)}, s2, 7\ns_lshl_b32 {s(S_RB)}, {s(S_RB)}, 2\ns_and_b32 {s(S_T1)}, {s(S_T0)}, 3\ns_add_u32 {s(S_RB)}, {s(S_RB)}, {s(S_T1)}\ns_lshr_b32 {s(S_CB)}, {s(S_T0)}, 2")
        else:
            e(f"s_lshl_b32 {s(S_RB)}, {s(S_R)}, 1\ns_lshr_b32 {s(S_T1)}, {s(S_J)}, 3\ns_add_u32 {s(S_RB)}, {s(S_RB)}, {s(S_T1)}\ns_and_b32 {s(S_CB)}, {s(S_J)}, 7")
        e(f"s_mov_b32 {s(S_MA)}, 0xffff\ns_mov_b32 {s(S_MA+1)}, 0xffff\ns_mov_b32 {s(S_MB)}, 0xffff0000\ns_mov_b32 {s(S_MB+1)}, 0xffff0000")
        self.t0, self.t1, self.t2 = t0, t1, t2

    def dma_chunk(self, c):
        L = []
        pre = f"s_add_u32 {s(S_T3)}, {s(S_ROT)}, {c % 8}\ns_and_b32 {s(S_T3)}, {s(S_T3)}, 7\n"
        if c < 8:
            L.append(pre + f"s_lshl_b32 {s(S_XO)}, {s(S_T3)}, 7\ns_add_u32 m0, {s(S_MX)}, {phys(c)}\ns_mul_i32 {s(S_WO)}, {s(S_T3)}, {64*3072}\n"
                     f"buffer_load_dwordx4 {v(self.vxa)}, {s(SX,4)}, {s(S_XO)} offen lds")
            for t in range(1, 4):
                L.append(f"buffer_load_dwordx4 {v(self.vxa+t)}, {s(SX,4)}, {s(S_XO)} offen offset:{t*1024} lds")
            for b in range(3):
                p = f"s_add_u32 m0, {s(S_MW)}, {phys(c)+16384}\n" if b == 0 else ""
                L.append(p + f"buffer_load_dwordx4 {v(self.vqa)}, {s(SWQ,4)}, {s(S_WO)} offen offset:{b*1024} lds")
        else:
            for m, srd in enumerate((SWG, SWU)):
                for p in range(3):
                    q = ""
                    if p == 0:
                        if m == 0: q = pre + f"s_lshl_b32 {s(S_XO)}, {s(S_MW)}, 1\ns_add_u32 m0, {s(S_XO)}, {phys(c)}\ns_mul_i32 {s(S_WO)}, {s(S_T3)}, {64*2752}\n"
                        else: q = f"s_add_u32 m0, {s(S_XO)}, {phys(c)+3072}\n"
                    L.append(q + f"buffer_load_dwordx4 {v(self.vfa+p)}, {s(srd,4)}, {s(S_WO)} offen offset:{p*1024} lds")
        return L

    def stage1(self):
        e, V, o = self.e, self.V, self.o
        look = o["look"]
        accq = V.alloc(64, 4)
        accf = V.alloc(96, 4)
        NR = 5
        ring = V.alloc(4*NR, 4)
        self.accq, self.accf = accq, accf
        items = []
        for c in range(16):
            for st in range(4):
                for t in range(4 if c < 8 else 6):
                    items.append((c, st, t))
        LEAD = 3
        def reads(idx):
            c, st, t = items[idx]
            r = ring + 4*(idx % NR)
            ps = (c + 2) % NSLOT
            win, base = ps // 2, (ps % 2) * SLOT
            L = []
            if c < 8 and t == 0:
                L.append(f"ds_read_b128 {a(16*c+4*st,4)}, {v(self.vxr+4*win+st)} offset:{base}")
            if c < 8 and t == 3:
                L.append(f"ds_read_b128 {v(r,4)}, {v(self.vgr)} offset:{c*128+st*32}")
            else:
                off = base + (16384 + st*3072 if c < 8 else st*6144) + t*1024
                L.append(f"ds_read_b64_tr_b16 {v(r,2)}, {v(self.vwr+win)} offset:{off}")
                L.append(f"ds_read_b64_tr_b16 {v(r+2,2)}, {v(self.vwr+win)} offset:{off+256}")
            return L
        def mfma(idx):
            c, st, t = items[idx]
            r = ring + 4*(idx % NR)
            x = a(16*(c % 8)+4*st, 4)
            d = (accq if c < 8 else accf) + 16*t
            cin = "0" if (c % 8 == 0 and st == 0) else v(d, 16)
            if c < 8 and t == 2: return f"{MF} {v(d,16)}, {x}, {v(r,4)}, {cin}"
            return f"{MF} {v(d,16)}, {v(r,4)}, {x}, {cin}"
        def barrier(c):
            e.wait_tag(f"c{c}")
            e("s_barrier")
        fill = []
        dq = []
        def drain(q):
            if q:
                f = q.pop(0)
                if callable(f): f()
                else: e(f[0], tag=f[1])
        self.fill = fill
        barrier(0)
        self.stamp()
        vone = V.alloc(1); self.vone = vone
        e(f"v_mov_b32 {v(vone)}, 1")
        e(f"buffer_store_dword {v(vone)}, {v(self.vdb)}, {s(SDBG,4)}, 0 offen sc1")
        for ins in self.dma_chunk(look): dq.append((ins, f"c{look}"))
        for i in range(LEAD):
            for r_ in reads(i): e(r_)
        k = 0
        for idx, (c, st, t) in enumerate(items):
            nxt = idx + LEAD
            if nxt < len(items) and items[nxt][0] != items[nxt-1][0]:
                while dq: drain(dq)
                cn = items[nxt][0]
                barrier(cn)
                if o["fine"]: self.stamp()
                if cn + look < 16:
                    for ins in self.dma_chunk(cn + look): dq.append((ins, f"c{cn+look}"))
                self.chunk_hook(cn)
                k = 0
            e(mfma(idx))
            if nxt < len(items):
                for r_ in reads(nxt): e(r_)
            per = 2 if c < 8 else 3
            if dq and k % per == 0: drain(dq)
            else: drain(fill)
            k += 1
            if c == 8 and st == 0 and t == 5:
                self.stamp()
                self.q_epilogue_queue()
        while fill: drain(fill)
        V.release(ring, 4*NR)
        V.release(self.vxa, 4); V.release(self.vqa, 1); V.release(self.vfa, 3); V.release(self.vwr, 3); V.release(self.vxr, 12); V.release(self.vgr, 1)

    def chunk_hook(self, cn):
        e, V, fill = self.e, self.V, self.fill
        if cn == 5:
            self.vinit_a = V.alloc(1); self.vinit = V.alloc(1)
            fill.append((f"v_and_b32 {v(self.vinit_a)}, 15, v0\nv_lshlrev_b32 {v(self.vinit_a)}, 2, {v(self.vinit_a)}\n"
                         f"buffer_load_dword {v(self.vinit)}, {v(self.vinit_a)}, {s(SDBG,4)}, 0 offen sc1", None))
        if cn == 11:
            def pub():
                e.wait_tag("kvst")
                self.poll("init", self.vinit_a, SDBG, self.vinit, "1")
                t0 = self.t0
                e(f"s_lshl_b32 {s(S_T1)}, {s(S_R)}, 12\ns_lshr_b32 {s(S_T2)}, {s(S_J)}, 2\ns_lshl_b32 {s(S_T2)}, {s(S_T2)}, 7\ns_add_u32 {s(S_T1)}, {s(S_T1)}, {s(S_T2)}")
                e(f"s_and_b32 {s(S_T2)}, {s(S_J)}, 3\ns_lshl_b32 {s(S_T2)}, {s(S_T2)}, 2\ns_add_u32 {s(S_T1)}, {s(S_T1)}, {s(S_T2)}\ns_add_u32 {s(S_T1)}, {s(S_T1)}, {FLAGOFF+16*128}")
                e(f"v_mov_b32 {v(t0)}, {s(S_T1)}\ns_mov_b64 exec, 1")
                e(f"buffer_atomic_add {v(self.vone)}, {v(t0)}, {s(SWS,4)}, 0 offen sc1")
                e(f"s_mov_b64 exec, -1")
                e(f"s_lshr_b32 {s(S_T2)}, {s(S_W)}, 1\ns_sub_u32 {s(S_T2)}, 2, {s(S_T2)}\ns_lshl_b32 {s(S_T3)}, {s(S_T2)}, 12\ns_sub_u32 {s(S_T1)}, {s(S_T1)}, {s(S_T3)}")
                e(f"s_cmp_ge_u32 {s(S_R)}, {s(S_T2)}\ns_cselect_b32 {s(S_T1)}, {s(S_T1)}, {OOB}\ns_cselect_b32 {s(3)}, 4, 0\nv_mov_b32 {v(self.vinit_a)}, {s(S_T1)}")
            fill.append(pub)
        if cn == 12 and self.o["touch"]:
            fill.append(self.touch_final_w)
        if cn == 13:
            fill.append((f"buffer_load_dword {v(self.vinit)}, {v(self.vinit_a)}, {s(SWS,4)}, 0 offen sc1", None))
        if cn == 15:
            def halo():
                self.poll("kv", self.vinit_a, SWS, self.vinit, "s3")
                t0 = self.t0
                e(f"s_lshl_b32 {s(S_T1)}, {s(S_J)}, 6\ns_lshl_b32 {s(S_T2)}, {s(S_R)}, 2\ns_add_u32 {s(S_T1)}, {s(S_T1)}, {s(S_T2)}\ns_lshl_b32 {s(S_T2)}, {s(S_W)}, 1\ns_add_u32 {s(S_T1)}, {s(S_T1)}, {s(S_T2)}")
                e(f"s_sub_u32 {s(S_T1)}, {s(S_T1)}, 8\ns_lshl_b32 {s(S_T1)}, {s(S_T1)}, 12\ns_add_u32 {s(S_T1)}, {s(S_T1)}, {KVOFF}\ns_cmp_eq_u32 s3, 0\ns_cselect_b32 {s(S_T1)}, {OOB}, {s(S_T1)}")
                e(f"v_add_u32 {v(t0)}, {s(S_T1)}, {v(self.vl16)}\ns_lshl_b32 {s(S_T2)}, {s(S_W)}, 13\ns_add_u32 m0, {s(S_T2)}, {KVB}\ns_mov_b32 {s(S_T1)}, 4096")
            fill.append(halo)
            for u in range(2):
                for t in range(4):
                    p = f"s_add_u32 m0, m0, 4096\n" if (u == 1 and t == 0) else ""
                    so = "0" if u == 0 else s(S_T1)
                    fill.append((p + f"buffer_load_dwordx4 {v(self.t0)}, {s(SWS,4)}, {so} offen offset:{t*1024} sc1 lds", "halo"))

    def touch_final_w(self):
        e, V = self.e, self.V
        t1, t2 = self.t1, self.t2
        self.vtouch = V.alloc(3, 1)
        if self.o["fmap"] == "4x8":
            e(f"s_mul_i32 {s(S_T1)}, {s(S_WV)}, {86*128}\nv_lshl_add_u32 {v(t1)}, v0, 7, {s(S_T1)}")
            e(f"buffer_load_dword {v(self.vtouch)}, {v(t1)}, {s(SWD,4)}, 0 offen")
            e(f"v_min_u32 {v(t2)}, 21, v0\ns_add_u32 {s(S_T1)}, {s(S_T1)}, {64*128}\nv_lshl_add_u32 {v(t2)}, {v(t2)}, 7, {s(S_T1)}")
            e(f"buffer_load_dword {v(self.vtouch+1)}, {v(t2)}, {s(SWD,4)}, 0 offen")
            e(f"v_and_b32 {v(t1)}, 31, v0\ns_lshl_b32 {s(S_T1)}, {s(S_WV)}, 12\nv_lshl_add_u32 {v(t1)}, {v(t1)}, 7, {s(S_T1)}")
            e(f"buffer_load_dword {v(self.vtouch+2)}, {v(t1)}, {s(SWO,4)}, 0 offen")
        else:
            e(f"s_lshr_b32 {s(S_T2)}, {s(S_CB)}, 2\ns_lshl_b32 {s(S_T2)}, {s(S_T2)}, 9")
            e(f"v_min_u32 {v(t2)}, 43, v0\nv_lshrrev_b32 {v(t1)}, 2, {v(t2)}\nv_and_b32 {v(t2)}, 3, {v(t2)}\nv_lshlrev_b32 {v(t2)}, 7, {v(t2)}\nv_lshl_add_u32 {v(t1)}, {v(t1)}, 10, {v(t2)}")
            e(f"s_mul_i32 {s(S_T1)}, {s(S_WV)}, {11*1024}\ns_add_u32 {s(S_T1)}, {s(S_T1)}, {s(S_T2)}")
            e(f"buffer_load_dword {v(self.vtouch)}, {v(t1)}, {s(SWD,4)}, {s(S_T1)} offen")
            e(f"v_min_u32 {v(t1)}, {3*1024+384}, {v(t1)}\ns_lshl_b32 {s(S_T1)}, {s(S_WV)}, 12\ns_add_u32 {s(S_T1)}, {s(S_T1)}, {s(S_T2)}")
            e(f"buffer_load_dword {v(self.vtouch+1)}, {v(t1)}, {s(SWO,4)}, {s(S_T1)} offen")

    def q_epilogue_queue(self):
        e, V, fill = self.e, self.V, self.fill
        A = self.accq
        self.vq = vq = V.alloc(8, 4)
        kv = V.alloc(16, 4)
        self.vg = V.alloc(2, 2)
        self.vinv = V.alloc(2, 2)
        vad, vld = V.alloc(1), V.alloc(1)
        L = []
        L.append(f"s_lshl_b32 {s(S_T1)}, {s(S_J)}, 6\ns_add_u32 {s(S_T1)}, {s(S_T1)}, {s(S_GB)}\ns_lshl_b32 {s(S_T1)}, {s(S_T1)}, 12\nv_add_u32 {v(vad)}, {s(S_T1)}, {v(self.vl16)}")
        L.append(f"s_add_u32 {s(S_T1)}, {s(S_MX)}, {KVB+8*4096}\nv_add_u32 {v(vld)}, {s(S_T1)}, {v(self.vl16)}")
        for b in range(4):
            src = A + 16 + 8*b
            L.append("\n".join(f"v_cvt_pk_bf16_f32 {v(kv+4*b+i)}, {v(src+2*i)}, {v(src+2*i+1)}" for i in range(4)))
            L.append((f"buffer_store_dwordx4 {v(kv+4*b,4)}, {v(vad)}, {s(SWS,4)}, 0 offen offset:{KVOFF+b*1024} sc1", "kvst"))
            L.append(f"ds_write_b128 {v(vld)}, {v(kv+4*b,4)} offset:{b*1024}")
        c = 0.25 * math.log2(math.e)
        L.append(f"s_mov_b32 {s(S_C0)}, {f2u(c):#x}\ns_mov_b32 {s(S_C0+1)}, {f2u(c):#x}")
        for i in range(0, 8, 2):
            L.append("\n".join(f"v_pk_mul_f32 {v(A+2*k,2)}, {v(A+2*k,2)}, {s(S_C0,2)}\nv_cvt_pk_bf16_f32 {v(vq+k)}, {v(A+2*k)}, {v(A+2*k+1)}" for k in (i, i+1)))
        z, g, inv = A + 48, self.vg, self.vinv
        L.append(f"v_cvt_pk_bf16_f32 {v(z)}, {v(z)}, {v(z)}\nv_and_b32 {v(z)}, 0xffff0000, {v(z)}\nv_mul_f32 {v(z)}, {f2u(-math.log2(math.e)):#x}, {v(z)}\nv_exp_f32 {v(z)}, {v(z)}")
        L.append(f"v_add_f32 {v(z)}, 1.0, {v(z)}\nv_rcp_f32 {v(z)}, {v(z)}")
        L.append(f"v_cvt_pk_bf16_f32 {v(z)}, {v(z)}, {v(z)}\nv_and_b32 {v(g)}, 0xffff0000, {v(z)}\nv_sub_f32 {v(z)}, 1.0, {v(g)}\nv_cvt_pk_bf16_f32 {v(z)}, {v(z)}, {v(z)}")
        L.append(f"v_and_b32 {v(z)}, 0xffff0000, {v(z)}\nv_rcp_f32 {v(z)}, {v(z)}")
        L.append(f"v_min_f32 {v(inv)}, {f2u(2.0**120):#x}, {v(z)}\nv_mov_b32 {v(inv+1)}, {v(inv)}\nv_mov_b32 {v(g+1)}, {v(g)}")
        def rel():
            V.release(kv, 16); V.release(vad, 1); V.release(vld, 1); V.release(A, 64)
        for x in L: fill.append(x if isinstance(x, tuple) else (x, None))
        fill.append(rel)

    def wf_setup(self):
        e, V = self.e, self.V
        t0, t1 = self.t0, self.t1
        self.vwa = vwa = V.alloc(4, 1)
        e(f"v_lshrrev_b32 {v(t1)}, 3, v0\nv_lshlrev_b32 {v(t1)}, 10, {v(t1)}\ns_lshl_b32 {s(S_T2)}, {s(S_CB)}, 7\nv_add_u32 {v(vwa)}, {s(S_T2)}, {v(t1)}")
        e(f"v_bfe_u32 {v(t1)}, v0, 4, 1\nv_lshlrev_b32 {v(t1)}, 2, {v(t1)}\nv_and_b32 {v(vwa+1)}, 7, v0\nv_xor_b32 {v(t1)}, {v(t1)}, {v(vwa+1)}\nv_lshl_add_u32 {v(vwa)}, {v(t1)}, 4, {v(vwa)}")
        for t in range(1, 4): e(f"v_add_u32 {v(vwa+t)}, {7168*t}, {v(vwa)}")
        e(f"s_mul_i32 {s(S_RING)}, {s(S_W)}, {WRING}")
        self.vwf = vwf = V.alloc(2, 1)
        e(f"v_lshrrev_b32 {v(t1)}, 5, v0\nv_lshlrev_b32 {v(t1)}, 10, {v(t1)}\nv_bfe_u32 {v(vwf)}, v0, 2, 2\nv_lshl_add_u32 {v(t1)}, {v(vwf)}, 7, {v(t1)}")
        e(f"v_bfe_u32 {v(vwf)}, v0, 3, 1\nv_lshl_add_u32 {v(t1)}, {v(vwf)}, 6, {v(t1)}\nv_bfe_u32 {v(vwf)}, v0, 4, 1\nv_lshl_add_u32 {v(t1)}, {v(vwf)}, 5, {v(t1)}")
        e(f"v_and_b32 {v(vwf)}, 3, v0\nv_lshl_add_u32 {v(t1)}, {v(vwf)}, 3, {v(t1)}\nv_xor_b32 {v(vwf+1)}, 64, {v(t1)}")
        e(f"v_add_u32 {v(vwf)}, {s(S_RING)}, {v(t1)}\nv_add_u32 {v(vwf+1)}, {s(S_RING)}, {v(vwf+1)}")
        e(f"s_mul_i32 {s(S_XO)}, {s(S_W)}, {22*16*1024}\ns_lshl_b32 {s(S_WO)}, {s(S_W)}, 17")

    def wf_dma(self, g):
        L = []
        srd, so, k = (SWD, S_XO, g) if g < 11 else (SWO, S_WO, g - 11)
        for t in range(4):
            p = f"s_add_u32 m0, {s(S_RING)}, {(g % 6)*4096}\ns_add_u32 {s(S_T3)}, {s(so)}, {k*32768}\n" if t == 0 else ""
            L.append((p + f"buffer_load_dwordx4 {v(self.vwa+t)}, {s(srd,4)}, {s(S_T3)} offen offset:{t*1024} lds", f"w{g}"))
        return L

    def wf_reads(self, g, dst):
        L = []
        for u in range(2):
            for ct in range(2):
                off = (g % 6)*4096 + u*2048
                r = dst + 8*u + 4*ct
                L.append(f"ds_read_b64_tr_b16 {a(r,2)}, {v(self.vwf+ct)} offset:{off}")
                L.append(f"ds_read_b64_tr_b16 {a(r+2,2)}, {v(self.vwf+ct)} offset:{off+512}")
        return L

    def f_epilogue(self):
        e, V = self.e, self.V
        A = self.accf
        self.stamp()
        self.wf_setup()
        e.wait_all(vm=False, lg=True)
        e("s_barrier")
        fill = []
        for g in range(6): fill += self.wf_dma(g)
        vad = V.alloc(2, 1)
        out = V.alloc(8, 4)
        e(f"s_mul_i32 {s(S_T1)}, {s(S_GB)}, 86\ns_lshl_b32 {s(S_T2)}, {s(self.S_PO)}, 1\ns_add_u32 {s(S_T1)}, {s(S_T1)}, {s(S_T2)}\ns_lshl_b32 {s(S_T1)}, {s(S_T1)}, 10\ns_add_u32 {s(S_T1)}, {s(S_T1)}, {HOFF}")
        e(f"v_add_u32 {v(vad)}, {s(S_T1)}, {v(self.vl16)}\nv_add_u32 {v(vad+1)}, 4096, {v(vad)}\nv_or_b32 {v(vad+1)}, {s(self.S_NP2)}, {v(vad+1)}")
        c = -math.log2(math.e)
        e(f"s_mov_b32 {s(S_C0)}, {f2u(c):#x}\ns_mov_b32 {s(S_C0+1)}, {f2u(c):#x}")
        inv = self.vinv
        for p in range(3):
            for half in range(2):
                G, U = A + 16*p + 8*half, A + 48 + 16*p + 8*half
                o_ = out + 4*half
                for i in range(4): e(f"v_pk_mul_f32 {v(G+2*i,2)}, {v(G+2*i,2)}, {s(S_C0,2)}")
                for i in range(8):
                    e(f"v_exp_f32 {v(G+i)}, {v(G+i)}")
                    if i in (2, 6) and fill: f = fill.pop(0); e(f[0], tag=f[1])
                for i in range(4): e(f"v_pk_fma_f32 {v(G+2*i,2)}, {v(G+2*i,2)}, {v(inv,2)}, {v(inv,2)}")
                for i in range(8):
                    e(f"v_rcp_f32 {v(G+i)}, {v(G+i)}")
                    if i in (2, 6) and fill: f = fill.pop(0); e(f[0], tag=f[1])
                for i in range(4): e(f"v_pk_mul_f32 {v(G+2*i,2)}, {v(G+2*i,2)}, {v(U+2*i,2)}")
                for i in range(4): e(f"v_cvt_pk_bf16_f32 {v(o_+i)}, {v(G+2*i)}, {v(G+2*i+1)}")
                st = 2*p + half
                ad, off = (vad, st*1024) if st < 4 else (vad+1, (st-4)*1024)
                e(f"buffer_store_dwordx4 {v(o_,4)}, {v(ad)}, {s(SWS,4)}, 0 offen offset:{off} sc1", tag="hst")
        for f in fill: e(f[0], tag=f[1])
        V.release(A, 96); V.release(vad, 2); V.release(out, 8); V.release(inv, 2)

    def attention(self):
        e, V, o = self.e, self.V, self.o
        t0, t1, t2 = self.t0, self.t1, self.t2
        self.stamp()
        md, mo, cz = V.alloc(16, 4), V.alloc(16, 4), V.alloc(16, 4)
        S = [V.alloc(16, 4), V.alloc(16, 4)]
        P = [V.alloc(8, 4), V.alloc(8, 4)]
        O = [V.alloc(16, 4), V.alloc(16, 4)]
        Kf = [V.alloc(4, 4) for _ in range(3)]
        Vf = [[V.alloc(8, 4) for _ in range(2)] for _ in range(2)]
        vkv = V.alloc(1)
        self.att = dict(md=md, mo=mo, cz=cz, S=S, P=P, O=O, Kf=Kf, Vf=Vf, vkv=vkv)
        NEG = f2u(-1.0e30)
        e(f"s_add_u32 {s(S_T1)}, {s(S_MX)}, {KVB}\nv_add_u32 {v(vkv)}, {s(S_T1)}, {v(self.vl16)}")
        e(f"v_and_b32 {v(t0)}, 31, v0\nv_lshrrev_b32 {v(t1)}, 5, v0\nv_lshlrev_b32 {v(t1)}, 2, {v(t1)}\nv_sub_u32 {v(t0)}, {v(t0)}, {v(t1)}\nv_mov_b32 {v(t1)}, {NEG:#x}\nv_mov_b32 {v(t2)}, 0")
        for i in range(16):
            e(f"v_cmp_le_i32 vcc, {8*(i>>2)+(i&3)}, {v(t0)}\nv_mov_b32 {v(cz+i)}, 0")
            e(f"v_mov_b32 {v(Vf[i>>3][0]+(i&7))}, 0x3f803f80")
            e(f"v_cndmask_b32 {v(md+i)}, {v(t1)}, {v(t2)}, vcc\nv_cndmask_b32 {v(mo+i)}, {v(t2)}, {v(t1)}, vcc")
            e(f"v_mov_b32 {v(Vf[i>>3][1]+(i&7))}, 0x3f803f80")
        e.wait_tag("halo"); e.wait_all(vm=False, lg=True)
        e("s_barrier")
        self.stamp()
        items = [(8 - t//2, t & 1) for t in range(18)]
        def kread(t):
            b, hd = items[t]
            return f"ds_read_b128 {v(Kf[t%3],4)}, {v(vkv)} offset:{b*4096+hd*1024}"
        def vread(t):
            b, hd = items[t]
            r = Vf[hd][(t >> 1) & 1]
            m = S_MA if hd == 0 else S_MB
            return (f"s_mov_b64 exec, {s(m,2)}\nds_read_b128 {v(r,4)}, {v(vkv)} offset:{b*4096+2048}\n"
                    f"ds_read_b128 {v(r+4,4)}, {v(vkv)} offset:{b*4096+3072}\ns_mov_b64 exec, -1")
        def qk(t):
            b, hd = items[t]
            C = md if b == 8 else (mo if b == 0 else cz)
            if hd == 0 and b < 8:
                lf, lb = f"L_fix_{b}", f"L_fixb_{b}"
                e(f"s_cmp_eq_u32 {s(S_GB)}, {7-b}\ns_cbranch_scc1 {lf}")
                e.label(lb)
                def out(lf=lf, lb=lb):
                    e.label(lf); e.fence_hazards()
                    for i in range(16): e.raw(f"    v_mov_b32 {v(cz+i)}, {NEG:#x}\n    v_mov_b32 {v(mo+i)}, {NEG:#x}")
                    e.raw(f"    s_nop 1\n    s_branch {lb}")
                self.tail.append(out)
            e(f"{MF} {v(S[t&1],16)}, {v(Kf[t%3],4)}, {v(self.vq+4*hd,4)}, {v(C,16)}")
        fill = []
        def add_group(g):
            def w(g=g): e.wait_tag(f"w{g}")
            fill.append(w)
            rs = self.wf_reads(g, 16*g)
            for k in range(0, 8, 2): fill.append((rs[k] + "\n" + rs[k+1], f"r{g}"))
            def w2(g=g): e.wait_tag(None, f"r{g}")
            fill.append(None)
            fill.append(w2)
            for x in self.wf_dma(g + 6): fill.append(x)
        self.vfl = vfl = V.alloc(2, 1)
        def pub_h():
            e.wait_tag("hst")
            e(f"s_lshl_b32 {s(S_T1)}, {s(S_R)}, 12\ns_lshr_b32 {s(S_T2)}, {s(S_W)}, 1\ns_lshl_b32 {s(S_T2)}, {s(S_T2)}, 9\ns_add_u32 {s(S_T1)}, {s(S_T1)}, {s(S_T2)}")
            e(f"s_lshr_b32 {s(S_T2)}, {s(S_J)}, 2\ns_lshl_b32 {s(S_T2)}, {s(S_T2)}, 7\ns_add_u32 {s(S_T1)}, {s(S_T1)}, {s(S_T2)}\ns_add_u32 s3, {s(S_T1)}, {FLAGOFF}")
            e(f"v_mov_b32 {v(vfl)}, s3\ns_mov_b64 exec, 1")
            e(f"buffer_atomic_add {v(self.vone)}, {v(vfl)}, {s(SWS,4)}, 0 offen sc1\ns_mov_b64 exec, -1")
            e(f"s_lshr_b32 {s(S_T1)}, {s(S_RB)}, 1\ns_lshl_b32 {s(S_T1)}, {s(S_T1)}, 12\ns_and_b32 {s(S_T2)}, {s(S_RB)}, 1\ns_lshl_b32 {s(S_T2)}, {s(S_T2)}, 9\ns_add_u32 {s(S_T1)}, {s(S_T1)}, {s(S_T2)}")
            e(f"s_lshl_b32 {s(S_T2)}, {s(S_W)}, 7\ns_add_u32 {s(S_T1)}, {s(S_T1)}, {s(S_T2)}\ns_add_u32 {s(S_T1)}, {s(S_T1)}, {FLAGOFF}\nv_mov_b32 {v(vfl)}, {s(S_T1)}")
        add_group(0); add_group(1)
        fill.append(pub_h)
        for g in range(2, 9): add_group(g)
        fill.append((f"buffer_load_dword {v(vfl+1)}, {v(vfl)}, {s(SWS,4)}, 0 offen sc1", None))
        nslots = 17 * 6
        per = len(fill) / nslots
        state = dict(acc=0.0)
        def slot():
            state["acc"] += per
            while state["acc"] >= 1.0 and fill:
                state["acc"] -= 1.0
                f = fill.pop(0)
                if f is None: continue
                if callable(f): f()
                else: e(f[0], tag=f[1])
        e(kread(0)); e(kread(1)); e(vread(0))
        qk(0)
        for t in range(18):
            b, hd = items[t]
            Sx, Px = S[t & 1], P[t & 1]
            if t + 2 < 18: e(kread(t + 2))
            if t + 1 < 18:
                e(vread(t + 1))
                qk(t + 1)
            vr = Vf[hd][(t >> 1) & 1]
            cin = "0" if t < 2 else v(O[hd], 16)
            for half in range(2):
                for i in range(8):
                    e(f"v_exp_f32 {v(Sx+8*half+i)}, {v(Sx+8*half+i)}")
                    if i in (1, 4): slot()
                for i in range(4): e(f"v_cvt_pk_bf16_f32 {v(Px+4*half+i)}, {v(Sx+8*half+2*i)}, {v(Sx+8*half+2*i+1)}")
                slot()
                if half == 1:
                    e(f"{MF} {v(O[hd],16)}, {v(vr,4)}, {v(Px,4)}, {cin}")
                    e(f"{MF} {v(O[hd],16)}, {v(vr+4,4)}, {v(Px+4,4)}, {v(O[hd],16)}")
        while fill:
            state["acc"] = 1.0; slot()
        self.stamp()
        l0, l1 = O[0] + 8, O[1]
        e(f"v_max3_f32 {v(t0)}, abs({v(O[0])}), abs({v(O[0]+1)}), abs({v(O[0]+2)})")
        regs = [O[0]+i for i in range(3, 8)] + [O[1]+8+i for i in range(8)]
        for k in range(0, 12, 2): e(f"v_max3_f32 {v(t0)}, {v(t0)}, abs({v(regs[k])}), abs({v(regs[k+1])})")
        e(f"v_max_f32 {v(t1)}, {v(l0)}, {v(l1)}\nv_mul_f32 {v(t1)}, {f2u(2.0**97):#x}, {v(t1)}\nv_max3_f32 {v(t0)}, {v(t0)}, abs({v(regs[12])}), {v(t1)}")
        e(f"v_min_f32 {v(t2)}, {v(l0)}, {v(l1)}\nv_add_f32 {v(t1)}, {v(l0)}, {v(l1)}")
        e(f"v_cmp_nlt_f32 vcc, {f2u(2.0**-30):#x}, {v(t2)}\ns_mov_b64 {s(S_C0,2)}, vcc")
        e(f"v_cmp_nlt_f32 vcc, 0, {v(t1)}\ns_or_b64 {s(S_C0,2)}, {s(S_C0,2)}, vcc")
        e(f"v_cmp_ngt_f32 vcc, {f2u(2.0**127):#x}, {v(t0)}\ns_or_b64 vcc, {s(S_C0,2)}, vcc")
        if o["force_slow"]: e("s_branch L_slow")
        else: e("s_cbranch_vccnz L_slow")
        e.label("L_slow_back")
        self.tail.append(self.slow_attention)
        vad = V.alloc(1)
        e(f"s_lshl_b32 {s(S_T1)}, {s(S_GB)}, 5\ns_lshl_b32 {s(S_T2)}, {s(S_J)}, 1\ns_add_u32 {s(S_T1)}, {s(S_T1)}, {s(S_T2)}\ns_lshl_b32 {s(S_T1)}, {s(S_T1)}, 10\ns_add_u32 {s(S_T1)}, {s(S_T1)}, {OOFF}")
        e(f"v_rcp_f32 {v(S[0])}, {v(l0)}\nv_rcp_f32 {v(S[0]+2)}, {v(l1)}\nv_add_u32 {v(vad)}, {s(S_T1)}, {v(self.vl16)}")
        for hd in range(2):
            e(f"v_mul_f32 {v(S[0]+2*hd)}, {v(self.vg)}, {v(S[0]+2*hd)}")
        for hd in range(2):
            src = O[hd] + 8*hd
            for i in range(4): e(f"v_pk_mul_f32 {v(src+2*i,2)}, {v(src+2*i,2)}, {v(S[0]+2*hd,2)} op_sel_hi:[1,0]")
            for i in range(4): e(f"v_cvt_pk_bf16_f32 {v(P[hd]+i)}, {v(src+2*i)}, {v(src+2*i+1)}")
            e(f"buffer_store_dwordx4 {v(P[hd],4)}, {v(vad)}, {s(SWS,4)}, 0 offen offset:{hd*1024} sc1", tag="ost")
        self.att_release = [(md,16),(mo,16),(cz,16),(S[0],16),(S[1],16),(O[0],16),(O[1],16),(vkv,1),(vad,1),(self.vq,8),(self.vg,2)] + \
            [(k,4) for k in Kf] + [(x,8) for y in Vf for x in y]
        self.att_release2 = [(P[0],8),(P[1],8)]

    def slow_attention(self):
        e = self.e
        A = self.att
        md, mo, cz, S, P, O, Kf, Vf, vkv = (A[k] for k in ("md","mo","cz","S","P","O","Kf","Vf","vkv"))
        t0, t1, t2 = self.t0, self.t1, self.t2
        R = e.raw
        R("L_slow:")
        R("    s_waitcnt lgkmcnt(0)\n    s_nop 15\n    s_nop 3")
        NEG = f2u(-1.0e30)
        for hd in range(2):
            q = v(self.vq+4*hd, 4)
            mask = S_MA if hd == 0 else S_MB
            for ps in range(2):
                def block(C):
                    R(f"    ds_read_b128 {v(Kf[0],4)}, {v(t2)} offset:{hd*1024}")
                    if ps == 1:
                        R(f"    s_mov_b64 exec, {s(mask,2)}\n    ds_read_b128 {v(Vf[hd][0],4)}, {v(t2)} offset:2048\n    ds_read_b128 {v(Vf[hd][0]+4,4)}, {v(t2)} offset:3072\n    s_mov_b64 exec, -1")
                    R(f"    s_waitcnt lgkmcnt(0)\n    {MF} {v(S[0],16)}, {v(Kf[0],4)}, {q}, {C}\n    s_nop 15")
                    if ps == 0:
                        for i in range(0, 16, 2): R(f"    v_max3_f32 {v(t0)}, {v(t0)}, {v(S[0]+i)}, {v(S[0]+i+1)}")
                    else:
                        for i in range(16): R(f"    v_sub_f32 {v(S[0]+i)}, {v(S[0]+i)}, {v(t0)}")
                        for i in range(16): R(f"    v_exp_f32 {v(S[0]+i)}, {v(S[0]+i)}")
                        R("    s_nop 0")
                        for i in range(8): R(f"    v_cvt_pk_bf16_f32 {v(P[0]+i)}, {v(S[0]+2*i)}, {v(S[0]+2*i+1)}")
                        R(f"    s_nop 1\n    {MF} {v(O[hd],16)}, {v(Vf[hd][0],4)}, {v(P[0],4)}, {v(O[hd],16)}")
                        R(f"    {MF} {v(O[hd],16)}, {v(Vf[hd][0]+4,4)}, {v(P[0]+4,4)}, {v(O[hd],16)}\n    s_nop 15")
                    R(f"    v_subrev_u32 {v(t2)}, 4096, {v(t2)}")
                n = f"L_sl_{hd}_{ps}"
                if ps == 0:
                    R(f"    v_mov_b32 {v(t0)}, {NEG:#x}")
                else:
                    for i in range(16): R(f"    v_mov_b32 {v(O[hd]+i)}, 0")
                R(f"    v_add_u32 {v(t2)}, {8*4096}, {v(vkv)}\n    s_min_u32 {s(S_CNT)}, {s(S_GB)}, 7")
                block(v(md, 16))
                R(f"{n}_loop:\n    s_cmp_eq_u32 {s(S_CNT)}, 0\n    s_cbranch_scc1 {n}_old")
                block("0")
                R(f"    s_sub_u32 {s(S_CNT)}, {s(S_CNT)}, 1\n    s_branch {n}_loop\n{n}_old:")
                R(f"    s_cmp_lt_u32 {s(S_GB)}, 8\n    s_cbranch_scc1 {n}_done")
                block(v(mo, 16))
                R(f"{n}_done:")
                if ps == 0:
                    R(f"    v_mov_b32 {v(t1)}, {v(t0)}\n    s_nop 1\n    v_permlane32_swap_b32 {v(t0)}, {v(t1)}\n    s_nop 1\n    v_max_f32 {v(t0)}, {v(t0)}, {v(t1)}")
        R("    s_nop 15\n    s_branch L_slow_back")

    def final(self):
        e, V, o = self.e, self.V, self.o
        t0, t1, t2 = self.t0, self.t1, self.t2
        for r, n in self.att_release: V.release(r, n)
        acc = V.alloc(64, 4)
        NB = 12
        ring = V.alloc(8*NB, 4)
        vh = V.alloc(4, 1)
        vo = V.alloc(2, 1)
        vfl = self.vfl
        e(f"s_lshl_b32 {s(S_T1)}, {s(S_RB)}, 1\ns_mul_i32 {s(S_T1)}, {s(S_T1)}, 86\ns_mul_i32 {s(S_T2)}, {s(S_W)}, 22\ns_add_u32 {s(S_T1)}, {s(S_T1)}, {s(S_T2)}\ns_lshl_b32 {s(S_T1)}, {s(S_T1)}, 10\ns_add_u32 {s(S_T1)}, {s(S_T1)}, {HOFF}")
        e(f"v_add_u32 {v(vh)}, {s(S_T1)}, {v(self.vl16)}\nv_add_u32 {v(vh+1)}, {86*1024}, {v(vh)}")
        e(f"s_cmp_eq_u32 {s(S_W)}, 3\ns_cselect_b32 {s(S_T2)}, {OOB}, 0\nv_or_b32 {v(vh+2)}, {s(S_T2)}, {v(vh)}\nv_or_b32 {v(vh+3)}, {s(S_T2)}, {v(vh+1)}")
        e(f"s_lshl_b32 {s(S_T1)}, {s(S_RB)}, 6\ns_lshl_b32 {s(S_T2)}, {s(S_W)}, 3\ns_add_u32 {s(S_T1)}, {s(S_T1)}, {s(S_T2)}\ns_lshl_b32 {s(S_T1)}, {s(S_T1)}, 10\ns_add_u32 {s(S_T1)}, {s(S_T1)}, {OOFF}")
        e(f"v_add_u32 {v(vo)}, {s(S_T1)}, {v(self.vl16)}\nv_add_u32 {v(vo+1)}, {32*1024}, {v(vo)}")
        self.poll("h", vfl, SWS, vfl+1, "8")
        self.stamp()
        for r, n in self.att_release2: V.release(r, n)
        def bload(i):
            L = []
            r = ring + 8*(i % NB)
            if i < 22: base, k = (vh if i < 20 else vh + 2), i
            else: base, k = vo, i - 22
            pre = f"s_mov_b32 {s(S_T2)}, {(k//4)*4096}\n" if k % 4 == 0 else ""
            for t in range(2):
                L.append((pre if t == 0 else "") + f"buffer_load_dwordx4 {v(r+4*t,4)}, {v(base+t)}, {s(SWS,4)}, {s(S_T2)} offen offset:{(k%4)*1024} sc1")
            return L
        def wreg(i):
            g, u = i // 2, i % 2
            gg = g if g < 9 else g - 9
            return 16*gg + 8*u
        nissued = 0
        def issue_to(n):
            nonlocal nissued
            while nissued < n:
                if nissued == 22:
                    self.stamp()
                    e(f"v_add_u32 {v(vfl)}, {8*128}, {v(vfl)}")
                    e(f"buffer_load_dword {v(vfl+1)}, {v(vfl)}, {s(SWS,4)}, 0 offen sc1")
                    self.poll("o", vfl, SWS, vfl+1, "8")
                    self.stamp()
                for x in bload(nissued): e(x)
                nissued += 1
        issue_to(4)
        e.wait_tag("ost")
        e(f"s_add_u32 s3, s3, {8*128}\nv_mov_b32 {v(t0)}, s3\ns_mov_b64 exec, 1")
        e(f"buffer_atomic_add {v(self.vone)}, {v(t0)}, {s(SWS,4)}, 0 offen sc1\ns_mov_b64 exec, -1")
        issue_to(NB - 1)
        for i in range(30):
            g = i // 2
            r = ring + 8*(i % NB)
            w = wreg(i)
            for rt in range(2):
                for ct in range(2):
                    d = acc + 32*rt + 16*ct
                    cin = "0" if i == 0 else v(d, 16)
                    e(f"{MF} {v(d,16)}, {a(w+4*ct,4)}, {v(r+4*rt,4)}, {cin}")
            if i % 2 == 1 and g + 9 < 15:
                e.wait_tag(f"w{g+9}")
                for x in self.wf_reads(g + 9, 16*g): e(x)
            lim = i + NB
            if i < 21: lim = min(lim, 22)
            issue_to(min(30, lim))
        self.stamp()
        e.wait_all(vm=False, lg=True)
        e("s_barrier")
        e(f"v_and_b32 {v(t0)}, 31, v0\nv_mul_u32_u24 {v(t0)}, {REDROW}, {v(t0)}\nv_lshrrev_b32 {v(t1)}, 5, v0\nv_lshl_add_u32 {v(t0)}, {v(t1)}, 4, {v(t0)}")
        e(f"s_mul_i32 {s(S_T1)}, {s(S_W)}, {64*REDROW}\nv_add_u32 {v(t0)}, {s(S_T1)}, {v(t0)}")
        for rt in range(2):
            for ct in range(2):
                for q in range(4):
                    d = acc + 32*rt + 16*ct + 4*q
                    e(f"ds_write_b128 {v(t0)}, {v(d,4)} offset:{rt*32*REDROW + (32*ct+8*q)*4}")
        e(f"v_lshrrev_b32 {v(t1)}, 3, v0\ns_lshl_b32 {s(S_T1)}, {s(S_W)}, 4\nv_add_u32 {v(t1)}, {s(S_T1)}, {v(t1)}")
        e(f"v_and_b32 {v(t2)}, 7, v0\nv_mul_u32_u24 {v(t0)}, {REDROW}, {v(t1)}\nv_lshl_add_u32 {v(t0)}, {v(t2)}, 5, {v(t0)}")
        e(f"s_lshl_b32 {s(S_T1)}, {s(S_RB)}, 16\ns_lshl_b32 {s(S_T2)}, {s(S_CB)}, 7\ns_add_u32 {s(S_T1)}, {s(S_T1)}, {s(S_T2)}\nv_lshlrev_b32 {v(t1)}, 10, {v(t1)}\nv_lshl_add_u32 {v(t1)}, {v(t2)}, 4, {v(t1)}\nv_add_u32 {v(t1)}, {s(S_T1)}, {v(t1)}")
        e.wait_all(vm=False, lg=True)
        e("s_barrier")
        for i in range(2):
            for w in range(4):
                for k in range(2):
                    e(f"ds_read_b128 {v(ring+32*i+8*w+4*k,4)}, {v(t0)} offset:{w*64*REDROW + i*8*REDROW + 16*k}")
        for i in range(2):
            b = ring + 32*i
            for k in range(4):
                e(f"v_pk_add_f32 {v(b+2*k,2)}, {v(b+2*k,2)}, {v(b+8+2*k,2)}\nv_pk_add_f32 {v(b+16+2*k,2)}, {v(b+16+2*k,2)}, {v(b+24+2*k,2)}")
            for k in range(4): e(f"v_pk_add_f32 {v(b+2*k,2)}, {v(b+2*k,2)}, {v(b+16+2*k,2)}")
            for k in range(4): e(f"v_cvt_pk_bf16_f32 {v(b+8+k)}, {v(b+2*k)}, {v(b+2*k+1)}")
            so = "0" if i == 0 else s(S_T2)
            if i == 1: e(f"s_mov_b32 {s(S_T2)}, 8192")
            e(f"buffer_store_dwordx4 {v(b+8,4)}, {v(t1)}, {s(SOUT,4)}, {so} offen {o['outsc'].replace('_',' ')}")
        self.stamp()
        if o["stamps"]:
            e.force_wait("s_waitcnt vmcnt(0)")
            self.stamp()
            e(f"s_memrealtime s[4:5]")
            e.force_wait("s_waitcnt lgkmcnt(0)")
            e(f"v_mov_b32 {v(t0)}, s4\nv_accvgpr_write_b32 {a(224+31)}, {v(t0)}")
            e(f"s_lshl_b32 {s(S_T1)}, s2, 2\ns_add_u32 {s(S_T1)}, {s(S_T1)}, {s(S_W)}\ns_lshl_b32 {s(S_T1)}, {s(S_T1)}, 7\ns_add_u32 {s(S_T1)}, {s(S_T1)}, {STAMPOFF}\nv_mov_b32 {v(t0)}, {s(S_T1)}")
            for k in range(8): e(f"buffer_store_dwordx4 {a(224+4*k,4)}, {v(t0)}, {s(SWS,4)}, 0 offen offset:{16*k}")

    def build(self):
        e = self.e
        self.prologue()
        self.stage1()
        self.f_epilogue()
        self.attention()
        self.final()
        if self.o["probe"] is not None:
            if self.o["probe"] < 0: e("s_mov_b32 s6, s100")
            e("s_sub_u32 s6, s6, s100\ns_mul_i32 s6, s6, 10\ns_add_u32 s6, s6, 6000\ns_mov_b32 s93, 0")
            e.label("L_probe")
            e.raw("    s_memrealtime s[4:5]\n    s_add_u32 s93, s93, 1\n    s_waitcnt lgkmcnt(0)\n    s_sub_u32 s4, s4, s100\n    s_cmp_gt_u32 s93, 0x100000\n    s_cbranch_scc1 L_end\n    s_cmp_lt_u32 s4, s6\n    s_cbranch_scc1 L_probe")
        e.label("L_end")
        e("s_endpgm")
        e.label("L_hot_end")
        for f in self.tail: f()
        hdr = open("gated_mix__sliding_block__glu_gated_glu__prompt.s.ref").read().split("; Override")[0] if self.o.get("hdr", True) else ""
        if self.o["pre"] or self.o["post"]:
            t = hdr + "; @launch kernel=nul_kernel grid=(1,1,1) block=(64,1,1) lds=0\n" * self.o["pre"]
            t += f"; @launch kernel={KNAME} grid=(256,1,1) block=(256,1,1) lds={LDS_BYTES}\n"
            t += "; @launch kernel=nul_kernel grid=(1,1,1) block=(64,1,1) lds=0\n" * self.o["post"]
        else:
            t = hdr + f"; @launch grid=(256,1,1) block=(256,1,1) lds={LDS_BYTES}\n"
        t += '.amdgcn_target "amdgcn-amd-amdhsa--gfx950"\n.text\n'
        t += f".globl {KNAME}\n.p2align 8\n.type {KNAME},@function\n{KNAME}:\n" + e.text()
        if self.o["pre"] or self.o["post"]:
            t += ".globl nul_kernel\n.p2align 8\n.type nul_kernel,@function\nnul_kernel:\n    s_endpgm\n"
        t += f'''.section .rodata,"a"
.p2align 6
.amdhsa_kernel {KNAME}
  .amdhsa_next_free_vgpr 512
  .amdhsa_next_free_sgpr 102
  .amdhsa_accum_offset 256
  .amdhsa_group_segment_fixed_size 0
  .amdhsa_kernarg_size 88
  .amdhsa_user_sgpr_count 2
  .amdhsa_user_sgpr_kernarg_segment_ptr 1
  .amdhsa_system_sgpr_workgroup_id_x 1
  .amdhsa_float_denorm_mode_32 3
.end_amdhsa_kernel
'''
        if self.o["pre"] or self.o["post"]:
            t += '''.p2align 6
.amdhsa_kernel nul_kernel
  .amdhsa_next_free_vgpr 8
  .amdhsa_next_free_sgpr 16
  .amdhsa_accum_offset 8
  .amdhsa_group_segment_fixed_size 0
  .amdhsa_kernarg_size 88
  .amdhsa_user_sgpr_count 2
  .amdhsa_user_sgpr_kernarg_segment_ptr 1
  .amdhsa_system_sgpr_workgroup_id_x 1
.end_amdhsa_kernel
'''
        return t


if __name__ == "__main__":
    out = sys.argv[1]
    kw = {}
    for x in sys.argv[2:]:
        k, val = x.split("=")
        kw[k] = int(val) if val.lstrip("-").isdigit() else val
    g = Gen(**kw)
    t = g.build()
    open(out, "w").write(t)
    print("vgpr hi", g.V.hi, "nops", g.e.nops, "lines", t.count("\n"), "stamps", g.nst)
```

```python
import re

_REG = re.compile(r"^-?\|?(?:abs\()?([vas])(?:(\d+)|\[(\d+):(\d+)\])\)?\|?$")
TRANS = ("v_exp_f32", "v_log_f32", "v_rcp_f32", "v_rsq_f32", "v_sqrt_f32", "v_sin_f32", "v_cos_f32")

def regs_of(op):
    op = op.strip()
    if op in ("vcc", "vcc_lo", "vcc_hi"): return {"vcc"}
    if op in ("exec", "exec_lo", "exec_hi"): return {"exec"}
    if op == "m0": return {"m0"}
    m = _REG.match(op)
    if not m: return set()
    k = m.group(1)
    if m.group(2) is not None: return {f"{k}{int(m.group(2))}"}
    return {f"{k}{i}" for i in range(int(m.group(3)), int(m.group(4)) + 1)}

def split_ops(s):
    out, cur, depth = [], "", 0
    for ch in s:
        if ch in "[(": depth += 1
        if ch in "])": depth -= 1
        if ch == "," and depth == 0:
            out.append(cur.strip()); cur = ""
        else: cur += ch
    if cur.strip(): out.append(cur.strip())
    return out

class I:
    __slots__ = ("text","mn","cls","rd","wr","srcc","ab","passes","states","wide","lds","data")
    def __init__(self, text):
        self.text = text
        t = text.split(";")[0].strip()
        parts = t.split(None, 1)
        mn = parts[0]; self.mn = mn
        rest = parts[1] if len(parts) > 1 else ""
        ops = split_ops(rest)
        mods = ""
        if ops:
            last = ops[-1].split()
            ops[-1] = last[0]; mods = " ".join(last[1:])
        R = [regs_of(o) for o in ops]
        U = lambda l: set().union(*l) if l else set()
        self.rd, self.wr, self.srcc, self.ab = set(), set(), set(), set()
        self.passes = 0; self.states = 1; self.wide = False; self.lds = False; self.data = set()
        if mn.startswith("v_mfma"):
            self.cls = "mfma"; self.wr = R[0]; self.ab = R[1] | R[2]; self.srcc = R[3]; self.rd = self.ab | self.srcc
            self.passes = 8 if "32x32" in mn else 4
        elif mn.startswith("v_"):
            self.cls = "trans" if mn.replace("_e32","").replace("_e64","") in TRANS else "valu"
            if mn.startswith("v_permlane"):
                self.rd = U(R); self.wr = U(R)
            elif mn.startswith("v_cmp"):
                self.wr = R[0]; self.rd = U(R[1:])
            elif mn.startswith("v_add_co") or mn.startswith("v_addc_co"):
                self.wr = R[0] | R[1]; self.rd = U(R[2:])
            else:
                self.wr = R[0]; self.rd = U(R[1:])
                if mn.startswith(("v_fmac", "v_dot2c", "v_writelane")): self.rd |= R[0]
        elif mn.startswith("ds_read"):
            self.cls = "ds"; self.wr = R[0]; self.rd = U(R[1:])
        elif mn.startswith("ds_"):
            self.cls = "ds"; self.rd = U(R)
        elif mn.startswith(("buffer_load", "global_load")):
            self.cls = "vm"
            if " lds" in " " + mods or mn.startswith("global_load_lds"):
                self.lds = True; self.rd = U(R) | {"m0"}
            else:
                self.wr = R[0]; self.rd = U(R[1:])
        elif mn.startswith(("buffer_store", "buffer_atomic")):
            self.cls = "vm"; self.rd = U(R); self.data = R[0]
            self.wide = "x4" in mn or "x3" in mn
        elif mn.startswith("global_store"):
            self.cls = "vm"; self.rd = U(R); self.data = R[1]; self.wide = "x4" in mn or "x3" in mn
        elif mn == "s_nop":
            self.cls = "nop"; self.states = int(ops[0]) + 1
        elif mn.startswith(("s_load", "s_memtime", "s_memrealtime")):
            self.cls = "smem"; self.wr = R[0]; self.rd = U(R[1:])
        elif mn.startswith(("s_waitcnt", "s_barrier", "s_cbranch", "s_branch", "s_endpgm", "s_sleep", "s_setprio")):
            self.cls = "ctl"
            if "vcc" in mn: self.rd = {"vcc"}
        elif mn.startswith("s_cmp"):
            self.cls = "salu"; self.rd = U(R)
        elif mn.startswith("s_"):
            self.cls = "salu"; self.wr = R[0]; self.rd = U(R[1:])
            if "saveexec" in mn: self.wr |= {"exec"}
        else:
            raise ValueError("unknown instruction: " + text)

def hazard(p, c):
    n = 0
    pv = p.cls in ("valu", "trans")
    cv = c.cls in ("valu", "trans")
    if pv:
        vw = {r for r in p.wr if r[0] in "va" and r != "vcc"}
        sw = p.wr - vw
        if c.cls == "mfma" and vw & c.rd: n = max(n, 2)
        if c.mn.startswith(("v_readfirstlane", "v_readlane")) and vw & c.rd: n = max(n, 1)
        if c.mn.startswith("v_permlane") and vw & c.rd: n = max(n, 2)
        if cv and ("row_" in c.text or "quad_perm" in c.text) and vw & c.rd: n = max(n, 2)
        if p.cls == "trans" and c.cls == "valu" and vw & c.rd: n = max(n, 1)
        if p.cls == "trans" and c.cls in ("mfma",) and vw & c.rd: n = max(n, 2)
        if sw:
            if cv and sw & c.rd: n = max(n, 2)
            if c.cls == "vm" and sw & c.rd: n = max(n, 5)
            if c.cls in ("salu", "ctl", "smem") and sw & c.rd: n = max(n, 1)
    if p.cls == "mfma":
        big = {4: 8, 8: 12}[p.passes]
        if c.cls == "mfma":
            if p.wr & c.ab: n = max(n, big)
            if p.wr & c.srcc and not (p.wr == c.srcc and p.passes == c.passes): n = max(n, big - 2)
            if p.wr & c.wr and not (p.wr == c.srcc and p.passes == c.passes): n = max(n, big - 2)
        elif cv or c.cls in ("ds", "vm"):
            if p.wr & (c.rd | c.wr): n = max(n, big)
        if cv and p.srcc & c.wr: n = max(n, {4: 3, 8: 7}[p.passes])
    if p.cls == "salu" and "m0" in p.wr and c.lds: n = max(n, 1)
    if p.cls == "vm" and p.wide and p.data & c.wr: n = max(n, 2)
    return n

def cost(ins):
    if ins.cls == "mfma" or ins.cls == "trans": return 8
    if ins.cls == "vm": return 14
    return 4*ins.states

def text_cost(text):
    return sum(cost(I(l.strip())) for l in text.split("\n") if l.strip() and not l.strip().endswith(":"))

class Q:
    def __init__(self, e):
        self.e = e; self.q = []; self.last = -10**9
    def add(self, item, tag=None, gap=0, c=None, name=None, dep=None):
        if c is None: c = 24 if callable(item) else text_cost(item)
        self.q.append((item, tag, gap, c, name, dep))
    def __len__(self): return len(self.q)
    def ready(self):
        if not self.q: return False
        item, tag, gap, c, name, dep = self.q[0]
        if self.e.t - self.last < gap: return False
        if dep is not None:
            if dep[0] not in self.e.T or self.e.t < self.e.T[dep[0]] + dep[1]: return False
        return True
    def can(self):
        return bool(self.q) and (self.q[0][5] is None or self.q[0][5][0] in self.e.T)
    def pop(self):
        item, tag, gap, c, name, dep = self.q.pop(0)
        assert dep is None or dep[0] in self.e.T, dep
        if gap: self.last = self.e.t
        if callable(item): item()
        else: self.e(item, tag=tag)
        if name: self.e.T[name] = self.e.t
    def flush(self):
        while self.q: self.pop()
    def pop_ready(self, n=1):
        k = 0
        while k < n and self.ready():
            self.pop(); k += 1
        return k

def flush_all(*qs):
    while any(q.q for q in qs):
        for q in qs:
            if q.can():
                q.pop(); break
        else: raise RuntimeError("queue deadlock")

class Emit:
    def __init__(self):
        self.out = []
        self.hist = []
        self.vmq = []
        self.lgq = []
        self.nops = 0
        self.uid = 0
        self.T = {}
        self.auto = None; self.acnt = 0
        self.t = 0
        self.mf = 0
        self.log = []
    def raw(self, line):
        self.out.append(line)
    def label(self, name):
        self.out.append(name + ":")
    def newlabel(self, b):
        self.uid += 1
        return f"{b}_{self.uid}"
    def _push(self, ins):
        self.out.append("    " + ins.text)
        self.hist.append(ins)
        if len(self.hist) > 24: self.hist.pop(0)
        if ins.cls == "mfma":
            self.t = max(self.t, self.mf); self.mf = self.t + 4*ins.passes; self.t += 8
        else:
            self.t += cost(ins)
    def _wait(self, vm=None, lg=None):
        parts = []
        if vm is not None:
            parts.append(f"vmcnt({min(vm,63)})"); del self.vmq[:len(self.vmq) - min(vm,63)]
        if lg is not None:
            parts.append(f"lgkmcnt({min(lg,15)})"); del self.lgq[:len(self.lgq) - min(lg,15)]
        if parts: self._push(I("s_waitcnt " + " ".join(parts)))
    def _need(self, q, pred):
        idx = -1
        for i, ent in enumerate(q):
            if pred(ent): idx = i
        return None if idx < 0 else len(q) - 1 - idx
    def wait_tag(self, tag, lgtag=None):
        vm = self._need(self.vmq, lambda e: e[1] == tag) if tag is not None else None
        lg = self._need(self.lgq, lambda e: e[1] == lgtag) if lgtag is not None else None
        self._wait(vm, lg)
    def wait_regs(self, text):
        touched = set()
        for o in split_ops(text): touched |= regs_of(o)
        vm = self._need(self.vmq, lambda e: e[0] & touched)
        lg = self._need(self.lgq, lambda e: e[0] & touched)
        if vm is not None or lg is not None: self._wait(vm, lg)
    def wait_all(self, vm=True, lg=True):
        self._wait(0 if vm and self.vmq else None, 0 if lg and self.lgq else None)
    def force_wait(self, text):
        ins = I(text); self._push(ins)
        if "vmcnt(0)" in text: self.vmq = []
        if "lgkmcnt(0)" in text: self.lgq = []
    def __call__(self, text, tag=None):
        for line in text.split("\n"):
            line = line.strip()
            if not line: continue
            if line.endswith(":"): self.label(line[:-1]); continue
            if line.startswith("."): self.raw(line); continue
            if line.startswith(";"): self.raw("    " + line); continue
            self.one(line, tag)
    def one(self, line, tag=None):
        ins = I(line)
        touched = ins.rd | ins.wr
        vm = self._need(self.vmq, lambda e: e[0] & touched)
        lg = self._need(self.lgq, lambda e: e[0] & touched)
        if vm is not None or lg is not None: self._wait(vm, lg)
        need = 0; dist = 0
        for p in reversed(self.hist):
            h = hazard(p, ins)
            if h - dist > need: need = h - dist
            dist += p.states
            if dist >= 20: break
        if need > 0:
            self.nops += need
            self.log.append((len(self.out), need, line))
            self._push(I(f"s_nop {need-1}"))
        self._push(ins)
        if ins.cls == "vm": self.vmq.append((set(ins.wr), tag))
        elif ins.cls == "ds": self.lgq.append((set(ins.wr), tag))
        if self.auto and not ins.mn.startswith(("s_cmp", "v_cmp", "s_mov_b64", "s_add_u32 m0")) and "m0" not in ins.wr:
            self.acnt += 1
            if self.acnt % self.auto[0] == 0: self.auto[1]()
    def fence_hazards(self):
        self._push(I("s_nop 15")); self._push(I("s_nop 3"))
    def text(self):
        return "\n".join(self.out) + "\n"

class Regs:
    def __init__(self, n, start=0):
        self.free = [True]*n
        for i in range(start): self.free[i] = False
        self.hi = start
        self.names = {}
    def alloc(self, n, align=1, name=None, big=False):
        if n >= 2 and align == 1: align = 2
        order = range(0, len(self.free) - n + 1) if (n < 8 and not big) else range(len(self.free) - n, -1, -1)
        for i in order:
            if i % align == 0 and all(self.free[i:i+n]):
                for k in range(i, i+n): self.free[k] = False
                self.hi = max(self.hi, len(self.free) - sum(self.free))
                return i
        raise RuntimeError(f"out of registers for {name} ({n})")
    def release(self, i, n):
        for k in range(i, i+n):
            assert not self.free[k]
            self.free[k] = True
```

```python
import sys, math, struct
from emit import Emit, Regs, Q, flush_all

KNAME = "gated_mix__sliding_block__glu_gated_glu__prompt_kernel"

KVOFF = 0
HOFF = 4 << 20
OOFF = 10 << 20
FLAGOFF = 12 << 20
STAMPOFF = 13 << 20
WS_USED = 14 << 20
OOB = 0x80000000

QSLOT, FSLOT = 28672, 24576
KVB = 114688
GWB = KVB
ZB = GWB + 2048
LDS_BYTES = 163840
WOB = 0
DN0, DN1 = 98304, 81920
REDB = 65536
REDROW = 272
BIAS = 4096

def f2u(x):
    return struct.unpack("<I", struct.pack("<f", x))[0]

def v(i, n=1): return f"v{i}" if n == 1 else f"v[{i}:{i+n-1}]"
def a(i, n=1): return f"a{i}" if n == 1 else f"a[{i}:{i+n-1}]"
def s(i, n=1): return f"s{i}" if n == 1 else f"s[{i}:{i+n-1}]"
def phys(c): return (c % 4) * (QSLOT if c < 8 else FSLOT)

MF = "v_mfma_f32_32x32x16_bf16"

SX, SWQ, SWG, SWU, SWD, SWO, SWS, SOUT, SDBG, SGW = 8, 12, 16, 20, 24, 28, 32, 36, 40, 44
SP = 48
S_W, S_R, S_J, S_ROT, S_RB, S_CB = 70, 71, 72, 73, 74, 75
S_T0, S_T1, S_T2, S_T3 = 76, 77, 78, 79
S_XO, S_WO = 80, 81
S_MX, S_MW = 82, 83
S_GB = 84
S_MA, S_MB = 86, 88
S_C0 = 90
S_RING = 92
S_CNT = 93
S_WV = 94
S_FKV, S_FKVC, S_KVT, S_FH, S_FHC, S_HALO, S_OST, S_HB, S_TCH, S_SL1, S_SL2 = 48, 49, 50, 51, 52, 53, 56, 57, 58, 59, 62
S_ST = 96


class Blk:
    def __init__(self, V, n, unit):
        self.V, self.unit = V, unit
        self.p = [V.alloc(unit, 4, big=True) for _ in range(n // unit)]
    def __getitem__(self, i): return self.p[i // self.unit] + i % self.unit
    def release(self):
        for x in self.p: self.V.release(x, self.unit)


class Gen:
    def __init__(self, stamps=False, force_slow=False, look=2, fmap="8x4", rot=True, touch=True, codepf=2, probe=None, fine=0, outsc='', pre=0, post=0, tail=2, early=2, hpoll=12, wgap=72, hgap=115, nobg=0, tpos=13, wstart=0, opoll=18, hlead=6, zoom=None, every=40, jx=0, t1=1, t1lo=2, t1n=4, t2lo=9, t2n=4, wr0=4, wrev=2):
        self.o = dict(stamps=stamps, force_slow=force_slow, look=look, fmap=fmap, rot=rot, touch=touch, codepf=codepf, probe=probe, fine=fine, outsc=outsc, pre=pre, post=post, tail=tail, early=early, hpoll=hpoll, wgap=wgap, hgap=hgap, nobg=nobg, tpos=tpos, wstart=wstart, opoll=opoll, hlead=hlead, zoom=zoom, every=every, jx=jx, t1=t1, t1lo=t1lo, t1n=t1n, t2lo=t2lo, t2n=t2n, wr0=wr0, wrev=wrev)
        self.e = Emit()
        self.V = Regs(256, 1)
        self.tail = []
        self.nst = 0
        self.model = []; self.marks = []; self.nmark = 0

    def stamp(self, auto=False):
        if self.o["probe"] is not None:
            if self.o["probe"] == self.nst:
                self.e.force_wait("s_waitcnt lgkmcnt(0)")
                self.e("s_memrealtime s[54:55]")
                self.e.force_wait("s_waitcnt lgkmcnt(0)")
            self.nst += 1
            return
        if not self.o["stamps"]: return
        e = self.e
        if self.o["zoom"] is not None and not auto:
            k = self.nmark; self.nmark += 1
            if k == self.o["zoom"]: e.auto = (self.o["every"], lambda: self.stamp(True))
            elif k == self.o["zoom"] + 1: e.auto = None
            elif k not in (0,): return
        if self.nst >= 60: return
        sv = e.auto; e.auto = None
        cur, prev = (96, 60) if self.nst % 2 == 0 else (60, 96)
        self.model.append(e.t); self.marks.append(len(e.out))
        if self.nst: e(f"v_writelane_b32 {v(self.vst)}, {s(prev)}, {self.nst}")
        e(f"s_memtime {s(cur,2)}")
        e.auto = sv
        self.nst += 1

    def srd(self, d, p, size):
        e = self.e
        e(f"s_mov_b64 {s(d,2)}, {s(p,2)}")

    def poll(self, name, vaddr, srd, vdst, target_s):
        e = self.e
        lr, lo = f"L_{name}_retry", f"L_{name}_ok"
        e(f"v_cmp_ne_u32 vcc, {target_s}, {v(vdst)}")
        e(f"s_cbranch_vccnz {lr}")
        e.label(lo)
        def out():
            e.label(lr)
            e.fence_hazards()
            e(f"s_mov_b32 {s(S_CNT)}, 0")
            e.label(lr + "_l")
            e.raw(f"    s_sleep 2")
            e.raw(f"    buffer_load_dword {v(vdst)}, {v(vaddr)}, {s(srd,4)}, 0 offen sc1")
            e.raw(f"    s_add_u32 {s(S_CNT)}, {s(S_CNT)}, 1")
            e.raw(f"    s_waitcnt vmcnt(0)")
            e.raw(f"    v_cmp_ne_u32 vcc, {target_s}, {v(vdst)}")
            e.raw(f"    s_cbranch_vccz {lo}")
            e.raw(f"    s_cmp_lt_u32 {s(S_CNT)}, 0x40000")
            e.raw(f"    s_cbranch_scc1 {lr}_l")
            e.raw(f"    s_branch {lo}")
        self.tail.append(out)

    def prologue(self):
        e, V, o = self.e, self.V, self.o
        e(f"s_cmp_ge_u32 s2, 256\ns_cbranch_scc1 L_end")
        e(f"s_load_dwordx16 {s(SP,16)}, s[0:1], 0")
        e(f"s_load_dwordx4 {s(SP+16,4)}, s[0:1], 64")
        e(f"s_load_dwordx2 {s(SP+20,2)}, s[0:1], 80")
        if o["probe"] is not None:
            e("s_memrealtime s[100:101]")
        if o["stamps"]:
            self.vst = V.alloc(1)
            e(f"s_memtime {s(S_ST+2,2)}")
            e(f"s_memrealtime s[100:101]")
        t0, t1, t2 = V.alloc(1), V.alloc(1), V.alloc(1)
        e(f"v_lshrrev_b32 {v(t0)}, 6, v0\nv_and_b32 v0, 63, v0")
        e(f"v_readfirstlane_b32 {s(S_W)}, {v(t0)}")
        e(f"s_lshr_b32 {s(S_T0)}, s2, 3")
        e(f"s_lshl_b32 {s(S_WV)}, {s(S_T0)}, 2\ns_add_u32 {s(S_WV)}, {s(S_WV)}, {s(S_W)}")
        if o["codepf"]:
            self.vpf = V.alloc(1)
            e(f"s_getpc_b64 s[4:5]")
            e.label("L_pc")
            if o["codepf"] == 1:
                e(f"v_and_b32 {v(t0)}, 3, v0\ns_lshl_b32 {s(S_T1)}, {s(S_WV)}, 9\nv_lshl_add_u32 {v(t0)}, {v(t0)}, 7, {s(S_T1)}")
                e(f"s_mov_b32 {s(S_T1)}, L_hot_end - L_pc - 4\nv_min_u32 {v(t0)}, {s(S_T1)}, {v(t0)}\nv_and_b32 {v(t0)}, -4, {v(t0)}")
                e(f"global_load_dword {v(self.vpf)}, {v(t0)}, s[4:5]")
            else:
                e(f"s_lshl_b32 {s(S_T1)}, {s(S_WV)}, 8\nv_lshl_add_u32 {v(t0)}, v0, 7, {s(S_T1)}")
                e(f"s_cmp_lt_u32 {s(S_T1)}, L_hot_end - L_pc - 256\ns_cbranch_scc0 L_nopf\ns_mov_b64 exec, 3")
                e(f"global_load_dword {v(self.vpf)}, {v(t0)}, s[4:5]")
                e.vmq.pop()
                e("s_mov_b64 exec, -1")
                e.label("L_nopf")
        e(f"s_and_b32 {s(S_T1)}, s2, 1\ns_lshl_b32 {s(S_R)}, {s(S_T1)}, 3\ns_and_b32 {s(S_T1)}, {s(S_T0)}, 7\ns_add_u32 {s(S_R)}, {s(S_R)}, {s(S_T1)}")
        e(f"s_bfe_u32 {s(S_J)}, s2, 0x20001\ns_lshl_b32 {s(S_J)}, {s(S_J)}, 2\ns_lshr_b32 {s(S_T1)}, {s(S_T0)}, 3\ns_add_u32 {s(S_J)}, {s(S_J)}, {s(S_T1)}")
        if o["jx"]: e(f"s_xor_b32 {s(S_J)}, {s(S_J)}, {o['jx']}")
        if o["rot"]:
            e(f"s_lshl_b32 {s(S_ROT)}, {s(S_J)}, 1\ns_add_u32 {s(S_ROT)}, {s(S_ROT)}, {s(S_R)}\ns_and_b32 {s(S_ROT)}, {s(S_ROT)}, 7")
        else:
            e(f"s_mov_b32 {s(S_ROT)}, 0")
        e(f"s_lshl_b32 {s(S_GB)}, {s(S_R)}, 2\ns_add_u32 {s(S_GB)}, {s(S_GB)}, {s(S_W)}")
        self.vxa = vxa = V.alloc(4, 1)
        e(f"v_lshrrev_b32 {v(t0)}, 3, v0\ns_lshl_b32 {s(S_T1)}, {s(S_GB)}, 15\nv_lshl_add_u32 {v(t0)}, {v(t0)}, 10, {s(S_T1)}")
        e(f"v_and_b32 {v(t1)}, 7, v0\nv_lshrrev_b32 {v(t2)}, 4, v0\nv_xor_b32 {v(t1)}, {v(t1)}, {v(t2)}")
        e(f"v_lshl_add_u32 {v(vxa)}, {v(t1)}, 4, {v(t0)}")
        e(f"v_xor_b32 {v(vxa+1)}, 64, {v(vxa)}\nv_add_u32 {v(vxa+1)}, 7168, {v(vxa+1)}")
        e(f"v_add_u32 {v(vxa+2)}, {2*7168}, {v(vxa)}\nv_add_u32 {v(vxa+3)}, {2*7168}, {v(vxa+1)}")
        self.vqa = vqa = V.alloc(1)
        self.vrow = vrow = V.alloc(1)
        e(f"v_lshrrev_b32 {v(vrow)}, 2, v0\ns_lshl_b32 {s(S_T1)}, {s(S_W)}, 4\nv_add_u32 {v(vrow)}, {s(S_T1)}, {v(vrow)}")
        e(f"v_and_b32 {v(t1)}, 3, v0\nv_lshlrev_b32 {v(t1)}, 4, {v(t1)}\nv_mul_u32_u24 {v(t0)}, 3072, {v(vrow)}")
        e(f"s_lshl_b32 {s(S_T1)}, {s(S_J)}, 6\nv_add3_u32 {v(vqa)}, {v(t0)}, {v(t1)}, {s(S_T1)}")
        e(f"s_lshl_b32 {s(S_MX)}, {s(S_W)}, 12\ns_mul_i32 {s(S_MW)}, {s(S_W)}, 3072")
        for d, size in ((SX, 2048*1024), (SWQ, 512*3072), (SWS, WS_USED), (SGW, 1024)):
            e(f"s_mov_b32 {s(d+2)}, {size}\ns_mov_b32 {s(d+3)}, 0x20000")
        self.vl16 = vl16 = V.alloc(1)
        e(f"v_lshlrev_b32 {v(vl16)}, 4, v0")
        e.force_wait("s_waitcnt lgkmcnt(0)")
        e(f"s_mov_b64 {s(SX,2)}, {s(SP,2)}\ns_mov_b64 {s(SWQ,2)}, {s(SP+2,2)}")
        self.stamp()
        for ins in self.dma_chunk(0): e(ins, tag="c0")
        e(f"s_mov_b64 {s(SWS,2)}, {s(SP+20,2)}\ns_mov_b64 {s(SGW,2)}, {s(SP+14,2)}")
        e(f"s_lshl_b32 {s(S_T1)}, {s(S_W)}, 10\ns_add_u32 m0, {s(S_T1)}, {GWB}")
        e(f"s_cmp_lt_u32 {s(S_W)}, 2\ns_cselect_b32 {s(S_T1)}, 0, {OOB}\nv_or_b32 {v(t0)}, {s(S_T1)}, {v(vl16)}")
        e(f"s_cmp_eq_u32 {s(S_W)}, 3\ns_cselect_b32 {s(S_T1)}, {ZB}, m0\ns_mov_b32 m0, {s(S_T1)}")
        e(f"buffer_load_dwordx4 {v(t0)}, {s(SGW,4)}, 0 offen lds", tag="c0")
        self.vz4 = vz4 = V.alloc(4, 2)
        for i in range(4): e(f"v_mov_b32 {v(vz4+i)}, 0")
        e(f"s_or_b32 {s(S_T1)}, {s(S_J)}, {s(S_W)}\ns_cmp_eq_u32 {s(S_T1)}, 0\ns_cselect_b32 {s(S_T2)}, 0, {OOB}")
        e(f"s_lshl_b32 {s(S_T1)}, {s(S_R)}, 12\ns_add_u32 {s(S_T1)}, {s(S_T1)}, {FLAGOFF}\ns_or_b32 {s(S_T1)}, {s(S_T1)}, {s(S_T2)}")
        e(f"v_and_b32 {v(t0)}, 31, v0\nv_lshl_add_u32 {v(t0)}, {v(t0)}, 7, {s(S_T1)}")
        self.vrs = V.alloc(1)
        e(f"v_mov_b32 {v(self.vrs)}, {v(t0)}")
        self.vdb = vdb = V.alloc(1)
        e(f"s_lshl_b32 {s(S_T1)}, {s(S_R)}, 2\ns_or_b32 {s(S_T1)}, {s(S_T1)}, {s(S_T2)}\nv_mov_b32 {v(vdb)}, {s(S_T1)}")
        e(f"s_sub_u32 {s(SWG)}, {s(SP+8)}, {BIAS}\ns_subb_u32 {s(SWG+1)}, {s(SP+9)}, 0")
        e(f"s_sub_u32 {s(SWU)}, {s(SP+10)}, {BIAS}\ns_subb_u32 {s(SWU+1)}, {s(SP+11)}, 0")
        e(f"s_mov_b64 {s(SWD,2)}, {s(SP+12,2)}\ns_mov_b64 {s(SWO,2)}, {s(SP+4,2)}\ns_mov_b64 {s(SOUT,2)}, {s(SP+16,2)}\ns_mov_b64 {s(SDBG,2)}, {s(SP+18,2)}")
        for d, size in ((SWG, 512*2752+BIAS), (SWU, 512*2752+BIAS), (SWD, 1376*1024), (SWO, 512*1024), (SOUT, 2048*1024), (SDBG, 256)):
            e(f"s_mov_b32 {s(d+2)}, {size}\ns_mov_b32 {s(d+3)}, 0x20000")
        self.vfa = vfa = V.alloc(3, 1)
        self.S_PO = S_PO = 85
        e(f"s_lshr_b32 {s(S_T1)}, {s(S_J)}, 2\ns_mul_i32 {s(S_T1)}, {s(S_T1)}, 11\ns_and_b32 {s(S_T2)}, {s(S_J)}, 3\ns_mul_i32 {s(S_T3)}, {s(S_T2)}, 3\ns_add_u32 {s(S_T1)}, {s(S_T1)}, {s(S_T3)}")
        e(f"s_cmp_eq_u32 {s(S_J)}, 15\ns_subb_u32 {s(S_PO)}, {s(S_T1)}, 0")
        e(f"s_cmp_eq_u32 {s(S_T2)}, 3\ns_cselect_b32 {s(S_T3)}, {OOB}, 0\ns_cmp_eq_u32 {s(S_J)}, 14\ns_cselect_b32 {s(95)}, {OOB}, {s(S_T3)}")
        self.S_NP2 = 95
        e(f"v_mul_u32_u24 {v(t0)}, 2752, {v(vrow)}\ns_lshl_b32 {s(S_T1)}, {s(S_PO)}, 6\ns_add_u32 {s(S_T1)}, {s(S_T1)}, {BIAS}\nv_add3_u32 {v(vfa)}, {v(t0)}, {v(t1)}, {s(S_T1)}")
        e(f"v_subrev_u32 {v(vfa+1)}, {1024-64}, {v(vfa)}\nv_subrev_u32 {v(vfa+2)}, {2*(1024-64)}, {v(vfa)}\nv_or_b32 {v(vfa+2)}, {s(self.S_NP2)}, {v(vfa+2)}")
        V.release(vrow, 1)
        self.vwr = vwr = V.alloc(2, 1)
        e(f"v_lshrrev_b32 {v(t0)}, 5, v0\nv_lshlrev_b32 {v(t0)}, 9, {v(t0)}\nv_bfe_u32 {v(t1)}, v0, 2, 2\nv_lshl_add_u32 {v(t0)}, {v(t1)}, 6, {v(t0)}")
        e(f"v_bfe_u32 {v(t1)}, v0, 4, 1\nv_lshl_add_u32 {v(t0)}, {v(t1)}, 5, {v(t0)}")
        e(f"v_and_b32 {v(t1)}, 1, v0\nv_lshl_add_u32 {v(t0)}, {v(t1)}, 4, {v(t0)}\nv_bfe_u32 {v(t1)}, v0, 1, 1\nv_lshl_add_u32 {v(vwr)}, {v(t1)}, 3, {v(t0)}")
        e(f"v_add_u32 {v(vwr+1)}, {2*QSLOT}, {v(vwr)}")
        self.vxr = vxr = V.alloc(8, 1)
        e(f"v_and_b32 {v(t0)}, 31, v0\nv_lshl_add_u32 {v(t0)}, {v(t0)}, 7, {s(S_MX)}\nv_bfe_u32 {v(t1)}, v0, 1, 3\nv_lshrrev_b32 {v(t2)}, 5, v0\nv_xor_b32 {v(t1)}, {v(t1)}, {v(t2)}")
        e(f"v_lshl_add_u32 {v(vxr)}, {v(t1)}, 4, {v(t0)}")
        for st in range(1, 4): e(f"v_xor_b32 {v(vxr+st)}, {32*st}, {v(vxr)}")
        for st in range(4): e(f"v_add_u32 {v(vxr+4+st)}, {2*QSLOT}, {v(vxr+st)}")
        self.vgr = vgr = V.alloc(1)
        e(f"s_lshl_b32 {s(S_T1)}, {s(S_ROT)}, 7\ns_add_u32 {s(S_T1)}, {s(S_T1)}, {GWB}\nv_lshl_add_u32 {v(t0)}, {v(t2)}, 4, {s(S_T1)}")
        e(f"v_and_b32 {v(t1)}, 27, v0\nv_cmp_eq_u32 vcc, 0, {v(t1)}\nv_mov_b32 {v(vgr)}, {ZB}\nv_cndmask_b32 {v(vgr)}, {v(vgr)}, {v(t0)}, vcc")
        if o["fmap"] == "4x8":
            e(f"s_and_b32 {s(S_RB)}, s2, 7\ns_lshl_b32 {s(S_RB)}, {s(S_RB)}, 2\ns_and_b32 {s(S_T1)}, {s(S_T0)}, 3\ns_add_u32 {s(S_RB)}, {s(S_RB)}, {s(S_T1)}\ns_lshr_b32 {s(S_CB)}, {s(S_T0)}, 2")
        else:
            e(f"s_lshl_b32 {s(S_RB)}, {s(S_R)}, 1\ns_lshr_b32 {s(S_T1)}, {s(S_J)}, 3\ns_add_u32 {s(S_RB)}, {s(S_RB)}, {s(S_T1)}\ns_and_b32 {s(S_CB)}, {s(S_J)}, 7")
        e(f"s_mov_b32 {s(S_MA)}, 0xffff\ns_mov_b32 {s(S_MA+1)}, 0xffff\ns_mov_b32 {s(S_MB)}, 0xffff0000\ns_mov_b32 {s(S_MB+1)}, 0xffff0000")
        self.t0, self.t1, self.t2 = t0, t1, t2
        self.scalar_setup()
        self.attention_setup()
        self.wf_setup()
        self.f_epilogue_setup()
        self.touch_setup()
        for ins in self.dma_chunk(1): e(ins, tag="c1")
        e(f"buffer_store_dwordx4 {v(self.vz4,4)}, {v(self.vrs)}, {s(SWS,4)}, 0 offen sc1", tag="rst")
        V.release(self.vrs, 1)

    def scalar_setup(self):
        e = self.e
        T1, T2, T3 = s(S_T1), s(S_T2), s(S_T3)
        e(f"s_lshl_b32 {T1}, {s(S_R)}, 12\ns_add_u32 {T1}, {T1}, {FLAGOFF}\ns_lshr_b32 {T2}, {s(S_J)}, 2\ns_lshl_b32 {T2}, {T2}, 7\ns_add_u32 {T1}, {T1}, {T2}")
        e(f"s_lshr_b32 {T3}, {s(S_W)}, 1\ns_lshl_b32 {s(S_FH)}, {T3}, 9\ns_add_u32 {s(S_FH)}, {s(S_FH)}, {T1}")
        e(f"s_and_b32 {T2}, {s(S_J)}, 3\ns_lshl_b32 {T2}, {T2}, 2\ns_add_u32 {T1}, {T1}, {T2}\ns_add_u32 {s(S_FKV)}, {T1}, {16*128}")
        e(f"s_sub_u32 {T2}, 2, {T3}\ns_lshl_b32 {T3}, {T2}, 12\ns_sub_u32 {T1}, {s(S_FKV)}, {T3}")
        e(f"s_cmp_ge_u32 {s(S_R)}, {T2}\ns_cselect_b32 {s(S_FKVC)}, {T1}, {OOB}\ns_cselect_b32 {s(S_KVT)}, 4, 0")
        e(f"s_lshl_b32 {T1}, {s(S_J)}, 6\ns_add_u32 {T1}, {T1}, {s(S_GB)}\ns_add_u32 {T1}, {T1}, {s(S_W)}\ns_sub_u32 {T1}, {T1}, 8\ns_lshl_b32 {T1}, {T1}, 12")
        e(f"s_add_u32 {T1}, {T1}, {KVOFF}\ns_cmp_eq_u32 {s(S_KVT)}, 0\ns_cselect_b32 {s(S_HALO)}, {OOB}, {T1}")
        e(f"s_lshr_b32 {T1}, {s(S_RB)}, 1\ns_lshl_b32 {T1}, {T1}, 12\ns_and_b32 {T2}, {s(S_RB)}, 1\ns_lshl_b32 {T2}, {T2}, 9\ns_add_u32 {T1}, {T1}, {T2}\ns_add_u32 {s(S_FHC)}, {T1}, {FLAGOFF}")
        e(f"s_lshl_b32 {T1}, {s(S_GB)}, 5\ns_lshl_b32 {T2}, {s(S_J)}, 1\ns_add_u32 {T1}, {T1}, {T2}\ns_lshl_b32 {T1}, {T1}, 10\ns_add_u32 {s(S_OST)}, {T1}, {OOFF}")
        e(f"s_mul_i32 {T1}, {s(S_RB)}, 172\ns_mul_i32 {T2}, {s(S_W)}, 22\ns_add_u32 {T1}, {T1}, {T2}\ns_lshl_b32 {T1}, {T1}, 10\ns_add_u32 {s(S_HB)}, {T1}, {HOFF}")

    def dma_chunk(self, c):
        L = []
        pre = f"s_add_u32 {s(S_T3)}, {s(S_ROT)}, {c % 8}\ns_and_b32 {s(S_T3)}, {s(S_T3)}, 7\n"
        if c < 8:
            L.append(pre + f"s_lshl_b32 {s(S_XO)}, {s(S_T3)}, 7\ns_add_u32 m0, {s(S_MX)}, {phys(c)}\ns_mul_i32 {s(S_WO)}, {s(S_T3)}, {64*3072}\n"
                     f"buffer_load_dwordx4 {v(self.vxa)}, {s(SX,4)}, {s(S_XO)} offen lds")
            for t in range(1, 4):
                L.append(f"buffer_load_dwordx4 {v(self.vxa+t)}, {s(SX,4)}, {s(S_XO)} offen offset:{t*1024} lds")
            for b in range(3):
                p = f"s_add_u32 m0, {s(S_MW)}, {phys(c)+16384}\n" if b == 0 else ""
                L.append(p + f"buffer_load_dwordx4 {v(self.vqa)}, {s(SWQ,4)}, {s(S_WO)} offen offset:{b*1024} lds")
        else:
            for m, srd in enumerate((SWG, SWU)):
                for p in range(3):
                    q = ""
                    if p == 0:
                        if m == 0: q = pre + f"s_lshl_b32 {s(S_XO)}, {s(S_MW)}, 1\ns_add_u32 m0, {s(S_XO)}, {phys(c)}\ns_mul_i32 {s(S_WO)}, {s(S_T3)}, {64*2752}\n"
                        else: q = f"s_add_u32 m0, {s(S_XO)}, {phys(c)+3072}\n"
                    L.append(q + f"buffer_load_dwordx4 {v(self.vfa+p)}, {s(srd,4)}, {s(S_WO)} offen offset:{p*1024} lds")
        return L

    def gemm_pass(self, items, reads, mfma, hook_barrier, after, LEAD=4):
        e = self.e
        seen = set()
        def issue_reads(i):
            c = items[i][0]
            if c not in seen:
                seen.add(c); hook_barrier(c)
            for r_ in reads(i): e(r_)
        for i in range(LEAD): issue_reads(i)
        for idx in range(len(items)):
            if idx % 2 == 0 and idx + 1 < len(items):
                m = mfma(idx + 1); e.wait_regs(m.split(None, 1)[1])
            e(mfma(idx))
            if idx + LEAD < len(items): issue_reads(idx + LEAD)
            after(idx)

    def stage1(self):
        e, V, o = self.e, self.V, self.o
        accq = Blk(V, 64, 16)
        NR = 6
        ring = Blk(V, 4*NR, 4)
        self.accq = accq
        self.dq = dq = Q(e)
        self.rq = rq = Q(e)
        self.vq_ = vq = Q(e)
        def rd_w(r, c, off):
            ps = c % 4
            win, base = ps // 2, (ps % 2) * (QSLOT if c < 8 else FSLOT)
            return [f"ds_read_b64_tr_b16 {v(r,2)}, {v(self.vwr+win)} offset:{base+off}",
                    f"ds_read_b64_tr_b16 {v(r+2,2)}, {v(self.vwr+win)} offset:{base+off+256}"]
        def queue_chunk(c):
            for ins in self.dma_chunk(c): dq.add(ins, f"c{c}", gap=(60 if c < 8 else 90))
        def barrier(c):
            while any(x[1] == f"c{c}" for x in dq.q): dq.pop()
            e.wait_tag(f"c{c}")
            e("s_barrier")
            if o["fine"] == 1 or c == 0: self.stamp()
        items = [(c, st, t) for c in range(8) for st in range(4) for t in range(4)]
        def reads(idx):
            c, st, t = items[idx]
            r = ring[4*(idx % NR)]
            ps = c % 4
            L = []
            if t == 0: L.append(f"ds_read_b128 {a(16*c+4*st,4)}, {v(self.vxr+4*(ps//2)+st)} offset:{(ps%2)*QSLOT}")
            if t == 3: L.append(f"ds_read_b128 {v(r,4)}, {v(self.vgr)} offset:{c*128+st*32}")
            else: L += rd_w(r, c, 16384 + st*3072 + t*1024)
            return L
        def mfma(idx):
            c, st, t = items[idx]
            r = ring[4*(idx % NR)]
            x = a(16*c+4*st, 4); d = accq[16*t]
            cin = "0" if (c == 0 and st == 0) else v(d, 16)
            if t == 2: return f"{MF} {v(d,16)}, {x}, {v(r,4)}, {cin}"
            return f"{MF} {v(d,16)}, {v(r,4)}, {x}, {cin}"
        def hook(c):
            dq.flush()
            barrier(c)
            if c == 2:
                self.vone = V.alloc(1)
                e.wait_tag("rst")
                e(f"v_mov_b32 {v(self.vone)}, 1")
                e(f"buffer_store_dword {v(self.vone)}, {v(self.vdb)}, {s(SDBG,4)}, 0 offen sc1")
                V.release(self.vdb, 1); V.release(self.vz4, 4)
            if c == 6:
                self.vinit_a = V.alloc(1); self.vinit = V.alloc(1)
                dq.add(f"v_and_b32 {v(self.vinit_a)}, 15, v0\nv_lshlrev_b32 {v(self.vinit_a)}, 2, {v(self.vinit_a)}\n"
                       f"buffer_load_dword {v(self.vinit)}, {v(self.vinit_a)}, {s(SDBG,4)}, 0 offen sc1")
            if c < 7: queue_chunk(c + 2)
            self.queue_touch(c)
        def after(idx):
            if dq.q and idx % 2 == 0: dq.pop()
        self.gemm_pass(items, reads, mfma, hook, after)
        dq.flush()
        V.release(self.vxa, 4); V.release(self.vqa, 1); V.release(self.vxr, 8); V.release(self.vgr, 1)
        self.stamp()
        e(f"v_add_u32 {v(self.vwr+1)}, {2*FSLOT}, {v(self.vwr)}")
        self.q_epilogue(lambda: (queue_chunk(9), dq.flush()))
        self.stamp()
        accf = Blk(V, 96, 16)
        self.accf = accf
        S_ = o["tail"]
        items = [(c, st, t) for c in range(8, 16 - S_) for st in range(4) for t in range(6)]
        nmain = len(items)
        items += [(c, st, t) for p in range(3) for c in range(16 - S_, 16) for st in range(4) for t in (p, p + 3)]
        def reads(idx):
            c, st, t = items[idx]
            return rd_w(ring[4*(idx % NR)], c, st*6144 + t*1024)
        def mfma(idx):
            c, st, t = items[idx]
            d = accf[16*t]
            cin = "0" if (c == 8 and st == 0) else v(d, 16)
            return f"{MF} {v(d,16)}, {v(ring[4*(idx%NR)],4)}, {a(16*(c-8)+4*st,4)}, {cin}"
        def hook(c):
            barrier(c)
            self.chunk_hook(c, 0)
            if c + 2 < 16: queue_chunk(c + 2)
            self.chunk_hook(c, 1)
        per = 8 * S_
        def after(idx):
            if S_ and idx >= nmain and (idx - nmain) % per == 1 and idx - nmain > per:
                self.f_epilogue_pair((idx - nmain)//per - 1, vq)
            if not dq.pop_ready(): rq.pop_ready()
            if vq.q:
                left = per - ((idx - nmain) % per) + 1
                for _ in range(-(-len(vq.q) // left)): vq.pop()
        self.gemm_pass(items, reads, mfma, hook, after)
        vq.flush()
        ring.release()
        V.release(self.vfa, 3); V.release(self.vwr, 2)

    def chunk_hook(self, cn, late):
        e, V, dq, o = self.e, self.V, self.dq, self.o
        t0 = self.t0
        if cn == 10 and not late:
            def pub():
                e.wait_tag("kvst")
                self.poll("init", self.vinit_a, SDBG, self.vinit, "1")
                e(f"v_mov_b32 {v(t0)}, {s(S_FKV)}\ns_mov_b64 exec, 1")
                e(f"buffer_atomic_add {v(self.vone)}, {v(t0)}, {s(SWS,4)}, 0 offen sc1")
                e(f"s_mov_b64 exec, -1\nv_mov_b32 {v(self.vinit_a)}, {s(S_FKVC)}")
            dq.add(pub)
        if cn == 12 and not late:
            dq.add(f"buffer_load_dword {v(self.vinit)}, {v(self.vinit_a)}, {s(SWS,4)}, 0 offen sc1")
        if cn == 13 and late:
            dq.add(lambda: self.poll("kv", self.vinit_a, SWS, self.vinit, s(S_KVT)))
            dq.add(f"v_add_u32 {v(t0)}, {s(S_HALO)}, {v(self.vl16)}\ns_lshl_b32 {s(S_T2)}, {s(S_W)}, 13")
            for u in range(2):
                for t in range(4):
                    p = f"s_add_u32 m0, {s(S_T2)}, {KVB+u*4096}\ns_mov_b32 {s(S_T1)}, {u*4096}\n" if t == 0 else ""
                    dq.add(p + f"buffer_load_dwordx4 {v(t0)}, {s(SWS,4)}, {s(S_T1)} offen offset:{t*1024} sc1 lds", "halo", gap=100)
        if late: self.queue_touch(cn)
        if cn == 13 and late:
            for g in range(o["early"]):
                self.wf_queue_dma(dq, g, dep=(f"r{g-1}", 80) if g else None)
                self.wf_queue_reads(self.rq, g)

    def touch_setup(self):
        e, V, o = self.e, self.V, self.o
        t0, t1, t2 = self.t0, self.t1, self.t2
        T1, T2 = s(S_T1), s(S_T2)
        self.vtouch = V.alloc(1)
        self.vta = vta = V.alloc(3, 1)
        e(f"v_and_b32 {v(t0)}, 7, v0\nv_lshlrev_b32 {v(t0)}, 7, {v(t0)}\nv_min_u32 {v(t0)}, 700, {v(t0)}\nv_bfe_u32 {v(t1)}, v0, 3, 2")
        e(f"s_lshl_b32 {T1}, {s(S_WV)}, 2\nv_add_u32 {v(t1)}, {T1}, {v(t1)}\nv_mul_u32_u24 {v(t1)}, 2752, {v(t1)}")
        e(f"s_lshr_b32 {T1}, {s(S_J)}, 2\ns_mul_i32 {T1}, {T1}, 704\ns_add_u32 {T1}, {T1}, {BIAS}\nv_add3_u32 {v(vta)}, {v(t0)}, {v(t1)}, {T1}")
        e(f"s_lshr_b32 {T2}, {s(S_CB)}, 2\ns_lshl_b32 {T2}, {T2}, 9")
        e(f"v_lshrrev_b32 {v(t1)}, 2, v0\nv_and_b32 {v(t2)}, 3, v0\nv_lshlrev_b32 {v(t2)}, 7, {v(t2)}\nv_lshl_add_u32 {v(t1)}, {v(t1)}, 10, {v(t2)}")
        e(f"s_mul_i32 {T1}, {s(S_WV)}, {11*1024}\ns_add_u32 {T1}, {T1}, {T2}\nv_add_u32 {v(vta+1)}, {T1}, {v(t1)}")
        e(f"s_lshl_b32 {T1}, {s(S_WV)}, 12\ns_add_u32 {T1}, {T1}, {T2}\nv_add_u32 {v(vta+2)}, {T1}, {v(t1)}")
        e(f"v_mov_b32 {v(t0)}, {OOB}")
        for k, n in enumerate((32, 44, 16)):
            e(f"v_cmp_gt_u32 vcc, {n}, v0\nv_cndmask_b32 {v(vta+k)}, {v(t0)}, {v(vta+k)}, vcc")
        for sl, lo, n in ((S_SL1, o["t1lo"], o["t1n"]), (S_SL2, o["t2lo"], o["t2n"])):
            e(f"s_lshr_b32 {T1}, s2, 3\ns_mul_i32 {T2}, {T1}, {(256 + n - 1)//n}\ns_lshr_b32 {T2}, {T2}, 8\ns_mul_i32 {T2}, {T2}, {n}\ns_sub_u32 {T1}, {T1}, {T2}\ns_add_u32 {s(sl)}, {T1}, {lo}")

    def touch(self, which, c):
        vta, d, t1, t2 = self.vta, v(self.vtouch), self.t1, self.t2
        sel = f"s_cmp_eq_u32 {s(S_SL1 if which == 1 else S_SL2)}, {c}\ns_cselect_b32 {s(S_TCH)}, 0, {OOB}\n"
        if which == 1:
            return sel + (f"v_or_b32 {v(t1)}, {s(S_TCH)}, {v(vta)}\n"
                    f"buffer_load_dword {d}, {v(t1)}, {s(SWG,4)}, 0 offen\nbuffer_load_dword {d}, {v(t1)}, {s(SWU,4)}, 0 offen")
        return sel + (f"v_or_b32 {v(t1)}, {s(S_TCH)}, {v(vta+1)}\nv_or_b32 {v(t2)}, {s(S_TCH)}, {v(vta+2)}\n"
                f"buffer_load_dword {d}, {v(t1)}, {s(SWD,4)}, 0 offen\nbuffer_load_dword {d}, {v(t2)}, {s(SWO,4)}, 0 offen")

    def queue_touch(self, c):
        o = self.o
        def emit(txt):
            n0 = len(self.e.vmq)
            self.e(txt)
            self.e.vmq[:] = [(set(), tg) if v(self.vtouch) in rg else (rg, tg) for rg, tg in self.e.vmq]
        if o["t1"] and o["t1lo"] <= c < o["t1lo"] + o["t1n"]:
            for l in [self.touch(1, c)]: self.dq.add(lambda l=l: self.touch_emit(l), c=50)
        if o["touch"] and o["t2lo"] <= c < o["t2lo"] + o["t2n"]:
            for l in [self.touch(2, c)]: self.dq.add(lambda l=l: self.touch_emit(l), c=60)

    def touch_emit(self, txt):
        e = self.e
        for line in txt.split("\n"):
            e(line)
            e.vmq[:] = [(set(), tg) if v(self.vtouch) in rg else (rg, tg) for rg, tg in e.vmq]

    def q_epilogue(self, loads):
        e, V = self.e, self.V
        A = self.accq
        self.vq = vq = V.alloc(8, 4)
        kv = Blk(V, 16, 4)
        self.vg = V.alloc(2, 2)
        self.vinv = V.alloc(2, 2)
        vad, vld = self.t1, self.t2
        e(f"s_lshl_b32 {s(S_T1)}, {s(S_J)}, 6\ns_add_u32 {s(S_T1)}, {s(S_T1)}, {s(S_GB)}\ns_lshl_b32 {s(S_T1)}, {s(S_T1)}, 12\nv_add_u32 {v(vad)}, {s(S_T1)}, {v(self.vl16)}")
        e(f"s_add_u32 {s(S_T1)}, {s(S_MX)}, {KVB+8*4096}\nv_add_u32 {v(vld)}, {s(S_T1)}, {v(self.vl16)}")
        c = 0.25 * math.log2(math.e)
        e(f"s_mov_b32 s4, {f2u(c):#x}\ns_mov_b32 s5, {f2u(c):#x}")
        for k in range(8):
            e(f"v_pk_mul_f32 {v(A[2*k],2)}, {v(A[2*k],2)}, s[4:5]")
        for b in range(4):
            src = A[16 + 8*b]
            for i in range(4): e(f"v_cvt_pk_bf16_f32 {v(kv[4*b+i])}, {v(src+2*i)}, {v(src+2*i+1)}")
            e(f"ds_write_b128 {v(vld)}, {v(kv[4*b],4)} offset:{b*1024}")
        z, g, inv = A[48], self.vg, self.vinv
        e(f"v_cvt_pk_bf16_f32 {v(z)}, {v(z)}, {v(z)}\nv_and_b32 {v(z)}, 0xffff0000, {v(z)}\nv_mul_f32 {v(z)}, {f2u(-math.log2(math.e)):#x}, {v(z)}\nv_exp_f32 {v(z)}, {v(z)}")
        for k in range(4): e(f"v_cvt_pk_bf16_f32 {v(vq+k)}, {v(A[2*k])}, {v(A[2*k+1])}")
        e(f"v_add_f32 {v(z)}, 1.0, {v(z)}\nv_rcp_f32 {v(z)}, {v(z)}")
        for k in range(4, 8): e(f"v_cvt_pk_bf16_f32 {v(vq+k)}, {v(A[2*k])}, {v(A[2*k+1])}")
        e(f"v_cvt_pk_bf16_f32 {v(z)}, {v(z)}, {v(z)}\nv_and_b32 {v(g)}, 0xffff0000, {v(z)}\nv_sub_f32 {v(z)}, 1.0, {v(g)}\nv_cvt_pk_bf16_f32 {v(z)}, {v(z)}, {v(z)}")
        e(f"v_and_b32 {v(z)}, 0xffff0000, {v(z)}\nv_rcp_f32 {v(z)}, {v(z)}")
        e(f"v_min_f32 {v(inv)}, {f2u(2.0**120):#x}, {v(z)}\nv_mov_b32 {v(inv+1)}, {v(inv)}")
        loads()
        for b in range(4):
            e(f"buffer_store_dwordx4 {v(kv[4*b],4)}, {v(vad)}, {s(SWS,4)}, 0 offen offset:{KVOFF+b*1024} sc1", "kvst")
        e("s_nop 1")
        kv.release(); A.release()

    def wf_setup(self):
        e, V = self.e, self.V
        self.wf_plan()
        t0, t1, t2 = self.t0, self.t1, self.t2
        self.vwa = vwa = V.alloc(4, 1)
        self.vwb = vwb = V.alloc(4, 1)
        e(f"v_lshrrev_b32 {v(t1)}, 3, v0\ns_lshl_b32 {s(S_T2)}, {s(S_CB)}, 7\nv_lshl_add_u32 {v(t0)}, {v(t1)}, 10, {s(S_T2)}")
        e(f"v_bfe_u32 {v(t1)}, v0, 4, 1\nv_and_b32 {v(t2)}, 7, v0\nv_lshl_add_u32 {v(t0)}, {v(t2)}, 4, {v(t0)}")
        e(f"v_lshlrev_b32 {v(t2)}, 6, {v(t1)}\nv_xor_b32 {v(vwa)}, {v(t0)}, {v(t2)}\nv_lshlrev_b32 {v(t2)}, 5, {v(t1)}\nv_xor_b32 {v(vwb)}, {v(t0)}, {v(t2)}")
        for t in range(1, 4): e(f"v_add_u32 {v(vwa+t)}, {7168*t}, {v(vwa)}")
        e(f"v_xor_b32 {v(vwb+1)}, 64, {v(vwb)}\nv_add_u32 {v(vwb+1)}, 7168, {v(vwb+1)}\nv_add_u32 {v(vwb+2)}, {2*7168}, {v(vwb)}\nv_add_u32 {v(vwb+3)}, {2*7168}, {v(vwb+1)}")
        self.vwf = vwf = V.alloc(4, 1)
        e(f"v_lshrrev_b32 {v(t1)}, 5, v0\nv_lshlrev_b32 {v(t1)}, 10, {v(t1)}\nv_bfe_u32 {v(t2)}, v0, 2, 2\nv_lshl_add_u32 {v(t1)}, {v(t2)}, 7, {v(t1)}")
        e(f"v_bfe_u32 {v(t2)}, v0, 3, 1\nv_lshl_add_u32 {v(t1)}, {v(t2)}, 6, {v(t1)}\nv_bfe_u32 {v(t2)}, v0, 4, 1\nv_lshl_add_u32 {v(t1)}, {v(t2)}, 5, {v(t1)}")
        e(f"v_and_b32 {v(t2)}, 3, v0\nv_lshl_add_u32 {v(t1)}, {v(t2)}, 3, {v(t1)}\nv_xor_b32 {v(t2)}, 64, {v(t1)}")
        e(f"s_lshl_b32 {s(S_RING)}, {s(S_W)}, 14\nv_add_u32 {v(vwf)}, {s(S_RING)}, {v(t1)}\nv_add_u32 {v(vwf+1)}, {s(S_RING)}, {v(t2)}")
        e(f"s_add_u32 {s(S_T1)}, {s(S_MX)}, {DN1}\nv_add_u32 {v(vwf+2)}, {s(S_T1)}, {v(t1)}\nv_add_u32 {v(vwf+3)}, {s(S_T1)}, {v(t2)}")
        e(f"s_mul_i32 s6, {s(S_W)}, {22*16*1024}\ns_lshl_b32 s7, {s(S_W)}, 17")

    def wf_plan(self):
        SL = [("dn", 0), ("dn", 1), ("wo", 0), ("wo", 1), ("wo", 2), ("wo", 3)]
        ne = self.o["early"]
        slot, prev, last = {}, {}, {}
        for g in range(9):
            k = 0 if g < ne else (g - ne) % 6
            slot[g] = k; prev[g] = last.get(k); last[k] = g
        for g in range(9, 15):
            slot[g] = g - 9; prev[g] = last.get(g - 9)
        self.wslot = {g: SL[k] for g, k in slot.items()}
        self.wprev = prev
        self.worder = list(range(ne, 9)) + sorted(range(9, 15), key=lambda g: -1 if prev[g] is None else prev[g])

    def wf_slot(self, g):
        return self.wslot[g]

    def wf_areg(self, g):
        return 128 + 16*g if g < 3 else 16*(g - 3)

    def wf_queue_dma(self, q, g, dep=None):
        kind, i = self.wf_slot(g)
        srd, so, k, va = (SWD, 6, g, self.vwa) if g < 11 else (SWO, 7, g - 11, self.vwb)
        m0 = f"s_add_u32 m0, {s(S_MX)}, {DN0 if i == 0 else DN1}" if kind == "dn" else f"s_add_u32 m0, {s(S_RING)}, {WOB+i*4096}"
        for t in range(4):
            p = f"{m0}\ns_add_u32 {s(S_T3)}, s{so}, {k*32768}\n" if t == 0 else ""
            if t == 0 and dep is not None and dep[0].startswith("r"):
                q.add(lambda tg=dep[0]: self.e.wait_tag(None, tg), dep=dep, c=4)
            q.add(p + f"buffer_load_dwordx4 {v(va+t)}, {s(srd,4)}, {s(S_T3)} offen offset:{t*1024} lds", f"w{g}", gap=self.o["wgap"], name=(f"e{g}" if t == 3 else None), dep=(dep if t == 0 else None))

    def wf_reads(self, g, dst):
        kind, i = self.wf_slot(g)
        L = []
        for u in range(2):
            for ct in range(2):
                if kind == "dn": ad, off = self.vwf + 2 + ct, (DN0 - DN1 if i == 0 else 0)
                else: ad, off = self.vwf + ct, WOB + i*4096
                off += u*2048
                L.append(f"ds_read_b64_tr_b16 {dst(8*u+4*ct)}, {v(ad)} offset:{off}")
                L.append(f"ds_read_b64_tr_b16 {dst(8*u+4*ct+2)}, {v(ad)} offset:{off+512}")
        return L

    def wf_queue_reads(self, q, g):
        e = self.e
        rs = self.wf_reads(g, lambda k: a(self.wf_areg(g) + k, 2))
        def first():
            assert not any(x[1] == f"w{g}" for x in self.dq.q)
            e.wait_tag(f"w{g}"); e(rs[0] + "\n" + rs[1], tag=f"r{g}")
        q.add(first, dep=(f"e{g}", 600), c=12)
        for k in range(2, 8, 2): q.add(rs[k] + "\n" + rs[k+1], f"r{g}", name=(f"r{g}" if k == 6 else None))

    def f_epilogue_setup(self):
        e, V = self.e, self.V
        self.vhad = vad = V.alloc(2, 1)
        self.vhout = V.alloc(8, 4)
        e(f"s_mul_i32 {s(S_T1)}, {s(S_GB)}, 86\ns_lshl_b32 {s(S_T2)}, {s(self.S_PO)}, 1\ns_add_u32 {s(S_T1)}, {s(S_T1)}, {s(S_T2)}\ns_lshl_b32 {s(S_T1)}, {s(S_T1)}, 10\ns_add_u32 {s(S_T1)}, {s(S_T1)}, {HOFF}")
        e(f"v_add_u32 {v(vad)}, {s(S_T1)}, {v(self.vl16)}\nv_add_u32 {v(vad+1)}, 4096, {v(vad)}\nv_or_b32 {v(vad+1)}, {s(self.S_NP2)}, {v(vad+1)}")
        c = -math.log2(math.e)
        e(f"s_mov_b32 {s(S_C0)}, {f2u(c):#x}\ns_mov_b32 {s(S_C0+1)}, {f2u(c):#x}")

    def f_epilogue_pair(self, p, q, packed=False):
        A, inv, out, vad = self.accf, self.vinv, self.vhout, self.vhad
        for half in range(2):
            G, U = A[16*p + 8*half], A[48 + 16*p + 8*half]
            o_ = out + 4*half
            if packed:
                for i in range(4): q.add(f"v_pk_mul_f32 {v(G+2*i,2)}, {v(G+2*i,2)}, {s(S_C0,2)}")
            else:
                for i in range(8): q.add(f"v_mul_f32 {v(G+i)}, {s(S_C0)}, {v(G+i)}")
            for i in range(8): q.add(f"v_exp_f32 {v(G+i)}, {v(G+i)}")
            if packed:
                for i in range(4): q.add(f"v_pk_fma_f32 {v(G+2*i,2)}, {v(G+2*i,2)}, {v(inv,2)}, {v(inv,2)}")
            else:
                for i in range(8): q.add(f"v_fma_f32 {v(G+i)}, {v(G+i)}, {v(inv)}, {v(inv)}")
            for i in range(8): q.add(f"v_rcp_f32 {v(G+i)}, {v(G+i)}")
            if packed:
                for i in range(4): q.add(f"v_pk_mul_f32 {v(G+2*i,2)}, {v(G+2*i,2)}, {v(U+2*i,2)}")
            else:
                for i in range(8): q.add(f"v_mul_f32 {v(G+i)}, {v(G+i)}, {v(U+i)}")
            for i in range(4): q.add(f"v_cvt_pk_bf16_f32 {v(o_+i)}, {v(G+2*i)}, {v(G+2*i+1)}")
            st = 2*p + half
            ad, off = (vad, st*1024) if st < 4 else (vad+1, (st-4)*1024)
            q.add(f"buffer_store_dwordx4 {v(o_,4)}, {v(ad)}, {s(SWS,4)}, 0 offen offset:{off} sc1", "hst")

    def f_epilogue(self):
        e, V, o = self.e, self.V, self.o
        self.stamp()
        vq = self.vq_
        e.wait_all(vm=False, lg=True)
        e("s_barrier")
        for p in range(2 if o["tail"] else 0, 3): self.f_epilogue_pair(p, vq, packed=True)
        vq.flush()
        self.accf.release(); V.release(self.vhad, 2); V.release(self.vhout, 8); V.release(self.vinv, 2)

    def attention_setup(self):
        e, V = self.e, self.V
        t0, t1, t2 = self.t0, self.t1, self.t2
        md, mo, cz = V.alloc(16, 4), V.alloc(16, 4), V.alloc(16, 4)
        Vf = [V.alloc(8, 4) for _ in range(2)]
        vkv = V.alloc(1)
        self.att = dict(md=md, mo=mo, cz=cz, Vf=Vf, vkv=vkv)
        NEG = f2u(-1.0e30)
        e(f"s_add_u32 {s(S_T1)}, {s(S_MX)}, {KVB}\nv_add_u32 {v(vkv)}, {s(S_T1)}, {v(self.vl16)}")
        e(f"v_and_b32 {v(t0)}, 31, v0\nv_lshrrev_b32 {v(t1)}, 5, v0\nv_lshlrev_b32 {v(t1)}, 2, {v(t1)}\nv_sub_u32 {v(t0)}, {v(t0)}, {v(t1)}\nv_mov_b32 {v(t1)}, {NEG:#x}\nv_mov_b32 {v(t2)}, 0")
        for i in range(16):
            e(f"v_cmp_le_i32 vcc, {8*(i>>2)+(i&3)}, {v(t0)}\nv_mov_b32 {v(cz+i)}, 0")
            e(f"v_mov_b32 {v(Vf[i>>3]+(i&7))}, 0x3f803f80")
            e(f"v_cndmask_b32 {v(md+i)}, {v(t1)}, {v(t2)}, vcc\nv_cndmask_b32 {v(mo+i)}, {v(t2)}, {v(t1)}, vcc")

    def h_addr_setup(self, q):
        V = self.V
        self.vh = vh = V.alloc(4, 1)
        q.add(f"v_add_u32 {v(vh)}, {s(S_HB)}, {v(self.vl16)}\nv_add_u32 {v(vh+1)}, {86*1024}, {v(vh)}")
        q.add(f"s_cmp_eq_u32 {s(S_W)}, 3\ns_cselect_b32 {s(S_T2)}, {OOB}, 0\nv_or_b32 {v(vh+2)}, {s(S_T2)}, {v(vh)}\nv_or_b32 {v(vh+3)}, {s(S_T2)}, {v(vh+1)}")

    def hreg(self, i, t):
        if i < 4: return a(96 + 8*i + 4*t, 4)
        if i < 14: return a(176 + 8*(i-4) + 4*t, 4)
        return v(self.vhb[8*(i-14) + 4*t], 4)

    def h_queue_loads(self, q, i):
        base = self.vh if i < 20 else self.vh + 2
        for t in range(2):
            pre = f"s_mov_b32 {s(S_T0)}, {(i//4)*4096}\n" if (i % 4 == 0 and t == 0) else ""
            q.add(pre + f"buffer_load_dwordx4 {self.hreg(i,t)}, {v(base+t)}, {s(SWS,4)}, {s(S_T0)} offen offset:{(i%4)*1024} sc1", gap=self.o["hgap"])

    def attention(self):
        e, V, o = self.e, self.V, self.o
        t0, t1, t2 = self.t0, self.t1, self.t2
        self.stamp()
        A = self.att
        md, mo, cz, Vf, vkv = A["md"], A["mo"], A["cz"], A["Vf"], A["vkv"]
        S = [V.alloc(16, 4), V.alloc(16, 4)]
        P = V.alloc(8, 4)
        O = [V.alloc(16, 4), V.alloc(16, 4)]
        Kf = [V.alloc(4, 4) for _ in range(2)]
        A.update(S=S, P=P, O=O, Kf=Kf)
        NEG = f2u(-1.0e30)
        dq, rq = self.dq, self.rq
        while any(x[1] == "halo" for x in dq.q): dq.pop()
        e.wait_tag("halo"); e.wait_all(vm=False, lg=True)
        e("s_barrier")
        self.stamp()
        items = [(8 - t//2, t & 1) for t in range(18)]
        def kread(t):
            b, hd = items[t]
            return f"ds_read_b128 {v(Kf[t&1],4)}, {v(vkv)} offset:{b*4096+hd*1024}"
        def vread(t):
            b, hd = items[t]
            r = Vf[hd]
            m = S_MA if hd == 0 else S_MB
            return (f"s_mov_b64 exec, {s(m,2)}\nds_read_b128 {v(r,4)}, {v(vkv)} offset:{b*4096+2048}\n"
                    f"ds_read_b128 {v(r+4,4)}, {v(vkv)} offset:{b*4096+3072}\ns_mov_b64 exec, -1")
        def qk(t):
            b, hd = items[t]
            C = md if b == 8 else (mo if b == 0 else cz)
            if hd == 0 and b < 8:
                lf, lb = f"L_fix_{b}", f"L_fixb_{b}"
                e(f"s_cmp_eq_u32 {s(S_GB)}, {7-b}\ns_cbranch_scc1 {lf}")
                e.label(lb)
                def out(lf=lf, lb=lb):
                    e.label(lf); e.fence_hazards()
                    for i in range(16): e.raw(f"    v_mov_b32 {v(cz+i)}, {NEG:#x}\n    v_mov_b32 {v(mo+i)}, {NEG:#x}")
                    e.raw(f"    s_nop 1\n    s_branch {lb}")
                self.tail.append(out)
            e(f"{MF} {v(S[t&1],16)}, {v(Kf[t&1],4)}, {v(self.vq+4*hd,4)}, {v(C,16)}")
        def pv(t, half):
            hd = items[t][1]
            cin = "0" if (t < 2 and half == 0) else v(O[hd], 16)
            e(f"{MF} {v(O[hd],16)}, {v(Vf[hd]+4*half,4)}, {v(P+4*half,4)}, {cin}")
        self.vfl = vfl = V.alloc(2, 1)
        fq = Q(e)
        e.T["att"] = e.t
        def pub_h():
            e.wait_tag("hst")
            e(f"v_mov_b32 {v(vfl)}, {s(S_FH)}\ns_mov_b64 exec, 1\nbuffer_atomic_add {v(self.vone)}, {v(vfl)}, {s(SWS,4)}, 0 offen sc1\ns_mov_b64 exec, -1")
            e(f"s_lshl_b32 {s(S_T2)}, {s(S_W)}, 7\ns_add_u32 {s(S_T1)}, {s(S_FHC)}, {s(S_T2)}\nv_mov_b32 {v(vfl)}, {s(S_T1)}")
        fq.add(pub_h, dep=("att", 700), name="pubh")
        self.h_addr_setup(fq)
        for n, g in enumerate(self.worder):
            p = self.wprev[g]
            dep = (f"r{p}", 80) if p is not None else None
            if n == 0 and dep is None: dep = ("att", o["wstart"])
            self.wf_queue_dma(dq, g, dep=dep)
            if g < 9: self.wf_queue_reads(rq, g)
            if n == len(self.worder) - 1 - (14 - o["hpoll"]):
                dq.add(f"buffer_load_dword {v(vfl+1)}, {v(vfl)}, {s(SWS,4)}, 0 offen sc1", dep=("pubh", 1200))
        self.hq = hq = Q(e)
        hq.add(lambda: self.poll("h", vfl, SWS, vfl+1, "8"))
        for i in range(14): self.h_queue_loads(hq, i)
        def bg():
            if fq.pop_ready(): return
            if o["nobg"]: return
            if dq.q or rq.q:
                if not dq.pop_ready(): rq.pop_ready()
            elif not fq.q: hq.pop_ready()
        e(kread(0)); e(kread(1)); e(vread(0))
        qk(0)
        for t in range(18):
            Sx = S[t & 1]
            if t + 1 < 18: qk(t + 1)
            if t + 2 < 18: e(kread(t + 2))
            def ex(i):
                e(f"v_exp_f32 {v(Sx+i)}, {v(Sx+i)}")
                if i % 2 == 1: bg()
            cv = lambda i: e(f"v_cvt_pk_bf16_f32 {v(P+i)}, {v(Sx+2*i)}, {v(Sx+2*i+1)}")
            for i in range(4): ex(i)
            if t > 0: pv(t - 1, 1)
            if t + 1 < 18: e(vread(t + 1))
            for i in range(4, 9): ex(i)
            for i in range(4): cv(i)
            for i in range(9, 12): ex(i)
            pv(t, 0)
            for i in range(12, 16): ex(i)
            for i in range(4, 8): cv(i)
            bg()
            if o["fine"] == 2: self.stamp()
        vad = V.alloc(1)
        e(f"v_add_u32 {v(vad)}, {s(S_OST)}, {v(self.vl16)}")
        pv(17, 1)
        self.stamp()
        self.fq = fq
        l0, l1 = O[0] + 8, O[1]
        e(f"v_max3_f32 {v(t0)}, abs({v(O[0])}), abs({v(O[0]+1)}), abs({v(O[0]+2)})")
        regs = [O[0]+i for i in range(3, 8)] + [O[1]+8+i for i in range(8)]
        for k in range(0, 12, 2): e(f"v_max3_f32 {v(t0)}, {v(t0)}, abs({v(regs[k])}), abs({v(regs[k+1])})")
        e(f"v_max_f32 {v(t1)}, {v(l0)}, {v(l1)}\nv_mul_f32 {v(t1)}, {f2u(2.0**97):#x}, {v(t1)}\nv_max3_f32 {v(t0)}, {v(t0)}, abs({v(regs[12])}), {v(t1)}")
        e(f"v_min_f32 {v(t2)}, {v(l0)}, {v(l1)}\nv_add_f32 {v(t1)}, {v(l0)}, {v(l1)}")
        e(f"v_cmp_nlt_f32 vcc, {f2u(2.0**-30):#x}, {v(t2)}\ns_mov_b64 {s(S_C0,2)}, vcc")
        e(f"v_cmp_nlt_f32 vcc, 0, {v(t1)}\ns_or_b64 {s(S_C0,2)}, {s(S_C0,2)}, vcc")
        e(f"v_cmp_ngt_f32 vcc, {f2u(2.0**127):#x}, {v(t0)}\ns_or_b64 vcc, {s(S_C0,2)}, vcc")
        if o["force_slow"]: e("s_branch L_slow")
        else: e("s_cbranch_vccnz L_slow")
        e.label("L_slow_back")
        self.tail.append(self.slow_attention)
        e(f"v_rcp_f32 {v(S[0])}, {v(l0)}\nv_rcp_f32 {v(S[0]+2)}, {v(l1)}")
        for hd in range(2):
            e(f"v_mul_f32 {v(S[0]+2*hd)}, {v(self.vg)}, {v(S[0]+2*hd)}")
        for hd in range(2):
            src = O[hd] + 8*hd
            for i in range(4): e(f"v_pk_mul_f32 {v(src+2*i,2)}, {v(src+2*i,2)}, {v(S[0]+2*hd,2)} op_sel_hi:[1,0]")
            for i in range(4): e(f"v_cvt_pk_bf16_f32 {v(P+4*hd+i)}, {v(src+2*i)}, {v(src+2*i+1)}")
            e(f"buffer_store_dwordx4 {v(P+4*hd,4)}, {v(vad)}, {s(SWS,4)}, 0 offen offset:{hd*1024} sc1", tag="ost")
        self.att_release = [(md,16),(mo,16),(cz,16),(S[0],16),(S[1],16),(O[0],16),(O[1],16),(vkv,1),(vad,1),(self.vq,8),(self.vg,2)] + \
            [(k,4) for k in Kf] + [(x,8) for x in Vf]

    def slow_attention(self):
        e = self.e
        A = self.att
        md, mo, cz, S, P, O, Kf, Vf, vkv = (A[k] for k in ("md","mo","cz","S","P","O","Kf","Vf","vkv"))
        t0, t1, t2 = self.t0, self.t1, self.t2
        R = e.raw
        R("L_slow:")
        R("    s_waitcnt lgkmcnt(0)\n    s_nop 15\n    s_nop 3")
        NEG = f2u(-1.0e30)
        for hd in range(2):
            q = v(self.vq+4*hd, 4)
            mask = S_MA if hd == 0 else S_MB
            for ps in range(2):
                def block(C):
                    R(f"    ds_read_b128 {v(Kf[0],4)}, {v(t2)} offset:{hd*1024}")
                    if ps == 1:
                        R(f"    s_mov_b64 exec, {s(mask,2)}\n    ds_read_b128 {v(Vf[hd],4)}, {v(t2)} offset:2048\n    ds_read_b128 {v(Vf[hd]+4,4)}, {v(t2)} offset:3072\n    s_mov_b64 exec, -1")
                    R(f"    s_waitcnt lgkmcnt(0)\n    {MF} {v(S[0],16)}, {v(Kf[0],4)}, {q}, {C}\n    s_nop 15")
                    if ps == 0:
                        for i in range(0, 16, 2): R(f"    v_max3_f32 {v(t0)}, {v(t0)}, {v(S[0]+i)}, {v(S[0]+i+1)}")
                    else:
                        for i in range(16): R(f"    v_sub_f32 {v(S[0]+i)}, {v(S[0]+i)}, {v(t0)}")
                        for i in range(16): R(f"    v_exp_f32 {v(S[0]+i)}, {v(S[0]+i)}")
                        R("    s_nop 0")
                        for i in range(8): R(f"    v_cvt_pk_bf16_f32 {v(P+i)}, {v(S[0]+2*i)}, {v(S[0]+2*i+1)}")
                        R(f"    s_nop 1\n    {MF} {v(O[hd],16)}, {v(Vf[hd],4)}, {v(P,4)}, {v(O[hd],16)}")
                        R(f"    {MF} {v(O[hd],16)}, {v(Vf[hd]+4,4)}, {v(P+4,4)}, {v(O[hd],16)}\n    s_nop 15")
                    R(f"    v_subrev_u32 {v(t2)}, 4096, {v(t2)}")
                n = f"L_sl_{hd}_{ps}"
                if ps == 0:
                    R(f"    v_mov_b32 {v(t0)}, {NEG:#x}")
                else:
                    for i in range(16): R(f"    v_mov_b32 {v(O[hd]+i)}, 0")
                R(f"    v_add_u32 {v(t2)}, {8*4096}, {v(vkv)}\n    s_min_u32 {s(S_CNT)}, {s(S_GB)}, 7")
                block(v(md, 16))
                R(f"{n}_loop:\n    s_cmp_eq_u32 {s(S_CNT)}, 0\n    s_cbranch_scc1 {n}_old")
                block("0")
                R(f"    s_sub_u32 {s(S_CNT)}, {s(S_CNT)}, 1\n    s_branch {n}_loop\n{n}_old:")
                R(f"    s_cmp_lt_u32 {s(S_GB)}, 8\n    s_cbranch_scc1 {n}_done")
                block(v(mo, 16))
                R(f"{n}_done:")
                if ps == 0:
                    R(f"    v_mov_b32 {v(t1)}, {v(t0)}\n    s_nop 1\n    v_permlane32_swap_b32 {v(t0)}, {v(t1)}\n    s_nop 1\n    v_max_f32 {v(t0)}, {v(t0)}, {v(t1)}")
        R("    s_nop 15\n    s_branch L_slow_back")

    def final(self):
        e, V, o = self.e, self.V, self.o
        t0, t1, t2 = self.t0, self.t1, self.t2
        for r, n in self.att_release: V.release(r, n)
        flush_all(self.fq, self.dq, self.rq)
        V.release(self.vwa, 4); V.release(self.vwb, 4)
        V.release(self.vta, 3); V.release(self.vinit, 1); V.release(self.vinit_a, 1)
        self.stamp()
        acc = Blk(V, 64, 16)
        self.vhb = Blk(V, 64, 4)
        w9 = Blk(V, 32, 4)
        acc2 = Blk(V, 16, 4)
        V.release(self.att['P'], 8)
        obx = Blk(V, 40, 4)
        ob = lambda i: obx[4*i] if i < 10 else self.vhb[4*(i - 10)]
        vfl, hq = self.vfl, self.hq
        for i in range(14, 22):
            if i == o["opoll"]: hq.add(f"buffer_load_dword {v(vfl+1)}, {v(vfl)}, {s(SWS,4)}, 0 offen sc1", dep=("aux", 0), name="oflag")
            self.h_queue_loads(hq, i)
        if o["opoll"] >= 22: hq.add(f"buffer_load_dword {v(vfl+1)}, {v(vfl)}, {s(SWS,4)}, 0 offen sc1", dep=("aux", 0), name="oflag")
        nload = lambda: sum(1 for x in hq.q if not callable(x[0]) and "buffer_load_dwordx4" in x[0])
        while 44 - nload() < 6: hq.pop()
        for g in (9, 10):
            e.wait_tag(f"w{g}")
            for x in self.wf_reads(g, lambda k: v(w9[16*(g-9) + k], 2)): e(x)
        V.release(self.vwf, 4)
        def wreg(i, ct):
            g, u = i // 2, i % 2
            if g >= 9: return v(w9[16*(g-9) + 8*u + 4*ct], 4)
            return a(self.wf_areg(g) + 8*u + 4*ct, 4)
        vwo = V.alloc(4, 1)
        e(f"v_and_b32 {v(t1)}, 15, v0\nv_lshrrev_b32 {v(t2)}, 4, v0")
        e(f"v_bfe_u32 {v(t0)}, v0, 2, 2\nv_lshlrev_b32 {v(vwo)}, 10, {v(t2)}\nv_lshl_add_u32 {v(vwo)}, {v(t0)}, 7, {v(vwo)}\nv_and_b32 {v(t0)}, 3, v0")
        e(f"v_lshl_add_u32 {v(vwo)}, {v(t0)}, 3, {v(vwo)}\nv_bfe_u32 {v(t0)}, v0, 3, 2\nv_lshl_add_u32 {v(vwo)}, {v(t0)}, 5, {v(vwo)}")
        e("\n".join(f"v_xor_b32 {v(vwo+ct)}, {32*ct}, {v(vwo)}" for ct in (1, 2, 3)))
        for g in range(11, 15): e.wait_tag(f"w{g}")
        e.wait_all(vm=False, lg=True)
        e("s_barrier")
        vo = V.alloc(1)
        aux = Q(e)
        aux.add(f"s_lshl_b32 {s(S_T1)}, {s(S_RB)}, 1\ns_lshr_b32 {s(S_T2)}, {s(S_W)}, 1\ns_add_u32 {s(S_T1)}, {s(S_T1)}, {s(S_T2)}\ns_lshl_b32 {s(S_T1)}, {s(S_T1)}, 15")
        aux.add(f"s_and_b32 {s(S_T2)}, {s(S_W)}, 1\ns_lshl_b32 {s(S_T2)}, {s(S_T2)}, 8\ns_add_u32 {s(S_T1)}, {s(S_T1)}, {s(S_T2)}\ns_add_u32 {s(S_T1)}, {s(S_T1)}, {OOFF}")
        aux.add(f"v_lshl_add_u32 {v(vo)}, {v(t1)}, 4, {s(S_T1)}\nv_lshl_add_u32 {v(vo)}, {v(t2)}, 9, {v(vo)}")
        vrw, vrr, vout = V.alloc(1), V.alloc(1), V.alloc(1)
        aux.add(f"v_and_b32 {v(t0)}, 31, v0\nv_mul_u32_u24 {v(vrw)}, {REDROW}, {v(t0)}\nv_lshrrev_b32 {v(t0)}, 5, v0\nv_lshl_add_u32 {v(vrw)}, {v(t0)}, 4, {v(vrw)}")
        aux.add(f"s_mul_i32 {s(S_T1)}, {s(S_W)}, {64*REDROW}\ns_add_u32 {s(S_T1)}, {s(S_T1)}, {REDB}\nv_add_u32 {v(vrw)}, {s(S_T1)}, {v(vrw)}")
        aux.add(f"s_lshl_b32 {s(S_T1)}, {s(S_W)}, 4\nv_add_u32 {v(t1)}, {s(S_T1)}, {v(t1)}\nv_mul_u32_u24 {v(vrr)}, {REDROW}, {v(t1)}\nv_lshl_add_u32 {v(vrr)}, {v(t2)}, 4, {v(vrr)}")
        aux.add(f"v_add_u32 {v(vrr)}, {REDB}, {v(vrr)}\ns_lshl_b32 {s(S_T1)}, {s(S_RB)}, 16\ns_lshl_b32 {s(S_T2)}, {s(S_CB)}, 7\ns_add_u32 {s(S_T1)}, {s(S_T1)}, {s(S_T2)}")
        aux.add(f"v_lshl_add_u32 {v(vout)}, {v(t1)}, 10, {s(S_T1)}\nv_lshrrev_b32 {v(t0)}, 1, {v(t2)}\nv_lshl_add_u32 {v(vout)}, {v(t0)}, 4, {v(vout)}\nv_and_b32 {v(t0)}, 1, {v(t2)}")
        aux.add(f"v_lshl_add_u32 {v(vout)}, {v(t0)}, 5, {v(vout)}\nv_and_b32 {v(t0)}, 3, v0\ns_add_u32 {s(S_T1)}, {s(S_FHC)}, {8*128}\nv_lshl_add_u32 {v(vfl)}, {v(t0)}, 7, {s(S_T1)}", name="aux", dep=("pubo", 0))
        blocks = []
        for k in range(9):
            blocks.append((2*k + 1, self.wf_areg(k)))
            if k < 7: blocks.append((2*k + 1, 96 + 16*k if k < 2 else 176 + 16*(k - 2)))
        wq = Q(e)
        woreg = {}
        for st, (free_after, r) in enumerate(blocks):
            woreg[st] = r
            for ct in range(4):
                off = WOB + st*4096
                wq.add(f"ds_read_b64_tr_b16 {a(r+4*ct,2)}, {v(vwo+ct)} offset:{off}\nds_read_b64_tr_b16 {a(r+4*ct+2,2)}, {v(vwo+ct)} offset:{off+512}", dep=(f"s{free_after}", 0))
        oq = Q(e)
        oq.add(lambda: self.poll("o", vfl, SWS, vfl+1, "8"), dep=("ochk", 0))
        for i in range(16):
            pre = f"s_mov_b32 {s(S_T3)}, {(i//2)*4096}\n" if i % 2 == 0 else ""
            oq.add(pre + f"buffer_load_dwordx4 {v(ob(i),4)}, {v(vo)}, {s(SWS,4)}, {s(S_T3)} offen offset:{(i%2)*2048} sc1", gap=40,
                   dep=((f"s{14 + (i-10)//2}", 0) if i >= 10 else None))
        published = False
        for i in range(22):
            while hq.q and hq.can() and 44 - nload() < 2*(i + o["hlead"]): hq.pop()
            n = 0
            for rt in range(2):
                for ct in range(2):
                    d = acc[32*rt + 16*ct]
                    cin = "0" if i == 0 else v(d, 16)
                    e(f"{MF} {v(d,16)}, {wreg(i,ct)}, {self.hreg(i,rt)}, {cin}")
                    if not aux.pop_ready(): wq.pop_ready(2)
                    if not hq.q and len(oq.q) > 7: oq.pop_ready()
            e.T[f"s{i}"] = e.t
            if i == min(o["opoll"], 21): e.T["ochk"] = e.t
            if not published and (i >= 3 or not any(x[1] == "ost" for x in e.vmq)):
                e.wait_tag("ost")
                e(f"s_add_u32 {s(S_T1)}, {s(S_FH)}, {8*128}\nv_mov_b32 {v(vfl+1)}, {s(S_T1)}\ns_mov_b64 exec, 1")
                e(f"buffer_atomic_add {v(self.vone)}, {v(vfl+1)}, {s(SWS,4)}, 0 offen sc1\ns_mov_b64 exec, -1")
                published = True; e.T["pubo"] = e.t
        assert not hq.q and not aux.q
        self.stamp()
        wq.flush()
        while len(oq.q) > 7: oq.pop()
        self.stamp()
        wr = [f"ds_write_b128 {v(vrw)}, {v(acc[32*rt + 16*ct + 4*q],4)} offset:{rt*32*REDROW + (32*ct+8*q)*4}" for rt in range(2) for ct in range(2) for q in range(4)]
        M16 = "v_mfma_f32_16x16x32_bf16"
        def wo_step(st, bgl=None, every=1):
            for ct in range(4):
                cin = "0" if st == 0 else v(acc2[4*ct], 4)
                e(f"{M16} {v(acc2[4*ct],4)}, {a(woreg[st]+4*ct,4)}, {v(ob(st),4)}, {cin}")
                if bgl and ct % every == 0: e(bgl.pop(0))
        nw0 = o["wr0"]
        for _ in range(nw0): e(wr.pop(0))
        st = 0
        while wr:
            wo_step(st, wr, o["wrev"]); st += 1
            if oq.q: oq.pop()
        oq.flush()
        e.wait_all(vm=False, lg=True)
        e("s_barrier")
        rd = [f"ds_read_b128 {v(acc[16*w+4*ct],4)}, {v(vrr)} offset:{w*64*REDROW + 64*ct}" for w in range(4) for ct in range(4)]
        self.stamp()
        while rd and st < 16:
            wo_step(st, rd); st += 1
        for x in rd: e(x)
        adds = [f"v_add_f32 {v(acc[k])}, {v(acc[k])}, {v(acc[16+k])}" for k in range(16)]
        adds += [f"v_add_f32 {v(acc[32+k])}, {v(acc[32+k])}, {v(acc[48+k])}" for k in range(16)]
        while st < 16:
            wo_step(st, adds); st += 1
        if len(adds) == 32:
            adds = [f"v_pk_add_f32 {v(acc[2*k],2)}, {v(acc[2*k],2)}, {v(acc[16+2*k],2)}" for k in range(8)]
            adds += [f"v_pk_add_f32 {v(acc[32+2*k],2)}, {v(acc[32+2*k],2)}, {v(acc[48+2*k],2)}" for k in range(8)]
        for x in adds: e(x)
        for k in range(8): e(f"v_pk_add_f32 {v(acc[2*k],2)}, {v(acc[2*k],2)}, {v(acc[32+2*k],2)}")
        self.stamp()
        pk = acc[16]
        for k in range(8): e(f"v_pk_add_f32 {v(acc[2*k],2)}, {v(acc[2*k],2)}, {v(acc2[2*k],2)}")
        for k in range(8): e(f"v_cvt_pk_bf16_f32 {v(pk+k)}, {v(acc[2*k])}, {v(acc[2*k+1])}")
        for hf in range(2):
            b = pk + 4*hf
            e(f"v_permlane16_swap_b32 {v(b)}, {v(b+2)}\nv_permlane16_swap_b32 {v(b+1)}, {v(b+3)}")
        for hf in range(2):
            e(f"buffer_store_dwordx4 {v(pk+4*hf,4)}, {v(vout)}, {s(SOUT,4)}, 0 offen offset:{64*hf} {o['outsc'].replace('_',' ')}")
        self.stamp()
        if o["stamps"]:
            e.force_wait("s_waitcnt vmcnt(0)")
            self.o["zoom"] = None; e.auto = None
            self.stamp()
            e(f"s_memrealtime s[4:5]")
            e.force_wait("s_waitcnt lgkmcnt(0)")
            e(f"v_writelane_b32 {v(self.vst)}, {s(96 if self.nst % 2 == 1 else 60)}, {self.nst}")
            e(f"v_writelane_b32 {v(self.vst)}, {s(S_ST+2)}, 0")
            e(f"v_writelane_b32 {v(self.vst)}, s4, 63\nv_writelane_b32 {v(self.vst)}, s100, 62")
            e(f"s_lshl_b32 {s(S_T1)}, s2, 2\ns_add_u32 {s(S_T1)}, {s(S_T1)}, {s(S_W)}\ns_lshl_b32 {s(S_T1)}, {s(S_T1)}, 8\ns_add_u32 {s(S_T1)}, {s(S_T1)}, {STAMPOFF}\nv_lshl_add_u32 {v(t0)}, v0, 2, {s(S_T1)}")
            e(f"buffer_store_dword {v(self.vst)}, {v(t0)}, {s(SWS,4)}, 0 offen")

    def build(self):
        e = self.e
        self.prologue()
        self.stage1()
        self.f_epilogue()
        self.attention()
        self.final()
        if self.o["probe"] is not None:
            if self.o["probe"] < 0: e("s_mov_b32 s54, s100")
            e("s_sub_u32 s6, s54, s100\ns_mul_i32 s6, s6, 10\ns_add_u32 s6, s6, 6000\ns_mov_b32 s93, 0")
            e.label("L_probe")
            e.raw("    s_memrealtime s[4:5]\n    s_add_u32 s93, s93, 1\n    s_waitcnt lgkmcnt(0)\n    s_sub_u32 s4, s4, s100\n    s_cmp_gt_u32 s93, 0x100000\n    s_cbranch_scc1 L_end\n    s_cmp_lt_u32 s4, s6\n    s_cbranch_scc1 L_probe")
        e.label("L_end")
        e("s_endpgm")
        e.label("L_hot_end")
        for f in self.tail: f()
        hdr = open("gated_mix__sliding_block__glu_gated_glu__prompt.s.ref").read().split("; Override")[0] if self.o.get("hdr", True) else ""
        if self.o["pre"] or self.o["post"]:
            t = hdr + "; @launch kernel=nul_kernel grid=(1,1,1) block=(64,1,1) lds=0\n" * self.o["pre"]
            t += f"; @launch kernel={KNAME} grid=(256,1,1) block=(256,1,1) lds={LDS_BYTES}\n"
            t += "; @launch kernel=nul_kernel grid=(1,1,1) block=(64,1,1) lds=0\n" * self.o["post"]
        else:
            t = hdr + f"; @launch grid=(256,1,1) block=(256,1,1) lds={LDS_BYTES}\n"
        t += '.amdgcn_target "amdgcn-amd-amdhsa--gfx950"\n.text\n'
        t += f".globl {KNAME}\n.p2align 8\n.type {KNAME},@function\n{KNAME}:\n" + e.text()
        if self.o["pre"] or self.o["post"]:
            t += ".globl nul_kernel\n.p2align 8\n.type nul_kernel,@function\nnul_kernel:\n    s_endpgm\n"
        t += f'''.section .rodata,"a"
.p2align 6
.amdhsa_kernel {KNAME}
  .amdhsa_next_free_vgpr 512
  .amdhsa_next_free_sgpr 102
  .amdhsa_accum_offset 256
  .amdhsa_group_segment_fixed_size 0
  .amdhsa_kernarg_size 88
  .amdhsa_user_sgpr_count 2
  .amdhsa_user_sgpr_kernarg_segment_ptr 1
  .amdhsa_system_sgpr_workgroup_id_x 1
  .amdhsa_float_denorm_mode_32 3
.end_amdhsa_kernel
'''
        if self.o["pre"] or self.o["post"]:
            t += '''.p2align 6
.amdhsa_kernel nul_kernel
  .amdhsa_next_free_vgpr 8
  .amdhsa_next_free_sgpr 16
  .amdhsa_accum_offset 8
  .amdhsa_group_segment_fixed_size 0
  .amdhsa_kernarg_size 88
  .amdhsa_user_sgpr_count 2
  .amdhsa_user_sgpr_kernarg_segment_ptr 1
  .amdhsa_system_sgpr_workgroup_id_x 1
.end_amdhsa_kernel
'''
        return t


if __name__ == "__main__":
    out = sys.argv[1]
    kw = {}
    for x in sys.argv[2:]:
        k, val = x.split("=")
        kw[k] = int(val) if val.lstrip("-").isdigit() else val
    g = Gen(**kw)
    t = g.build()
    open(out, "w").write(t)
    print("vgpr hi", g.V.hi, "nops", g.e.nops, "lines", t.count("\n"), "stamps", g.nst)
    if g.model: print("model dif", *[b - a_ for a_, b in zip(g.model, g.model[1:])])
    import json; json.dump(dict(model=g.model, marks=g.marks, out=g.e.out), open(out + ".json", "w"))
```
